```python
import torch

def _softmax(x, axis=-1):
    return torch.softmax(x, dim=axis)
def _gelu(x):
    return torch.nn.functional.gelu(x, approximate="tanh")
def _silu(x):
    return torch.nn.functional.silu(x)
def _sigmoid(x):
    return torch.sigmoid(x)
def _layernorm(x, axis=-1, eps=1e-5):
    m = x.mean(dim=axis, keepdim=True)
    v = x.var(dim=axis, keepdim=True, unbiased=False)
    return (x - m) / torch.sqrt(v + eps)
def _scatter_add(tgt, idx, src, axis=0):
    return tgt.clone().index_add_(axis, idx, src)
def _segment_sum(src, seg, n):
    out = torch.zeros((n,) + src.shape[1:], dtype=src.dtype)
    return out.index_add_(0, seg, src)
def _pad(x, pw):
    flat = tuple(v for pair in reversed(pw) for v in pair)
    return torch.nn.functional.pad(x, flat)

kernel_name = 'parallel_sum__sliding_local_dilated__glu_gated_reglu__prompt'

def setup_inputs():

    _w = (lambda a: (lambda t: t.to(torch.bfloat16) if t.is_floating_point() else t)(torch.as_tensor(a)))
    def _A_setup():
        B, S, D = 1, 2048, 512
        return {
            "x": _w((lambda *s: torch.randn(*s, dtype=torch.bfloat16) * 0.05)(B, S, D)),
            "wqkv": _w((lambda *s: torch.randn(*s, dtype=torch.bfloat16) * 0.05)(D, 3 * D)),
            "wo": _w((lambda *s: torch.randn(*s, dtype=torch.bfloat16) * 0.05)(D, D)),
        }
    _A_in = _A_setup()

    def _B_setup():
        B, S, D, F = 1, 2048, 512, 1792
        return {
            "x": _w((lambda *s: torch.randn(*s, dtype=torch.bfloat16) * 0.05)(B, S, D)),
            "W_gate": _w((lambda *s: torch.randn(*s, dtype=torch.bfloat16) * 0.8)(D, F) * (2.0 / D) ** 0.5),
            "W_up": _w((lambda *s: torch.randn(*s, dtype=torch.bfloat16) * 0.8)(D, F) * (2.0 / D) ** 0.5),
            "W_down": _w((lambda *s: torch.randn(*s, dtype=torch.bfloat16) * 0.8)(F, D) * (1.0 / F) ** 0.5),
        }
    _B_in = _B_setup()

    return {
        "A_x": _A_in["x"],
        "A_wqkv": _A_in["wqkv"],
        "A_wo": _A_in["wo"],
        "B_x": _B_in["x"],
        "B_W_gate": _B_in["W_gate"],
        "B_W_up": _B_in["W_up"],
        "B_W_down": _B_in["W_down"],
    }

def reference(A_x, A_wqkv, A_wo, B_x, B_W_gate, B_W_up, B_W_down):
    def _A_ref(x, wqkv, wo):
        B, S, D = x.shape
        H = 32; Dh = D // H
        W, dil = 8, 2
        qkv = (lambda x, *d: x.permute(*d))((x @ wqkv).reshape(B, S, 3, H, Dh), 2, 0, 3, 1, 4)
        q, k, v = qkv[0], qkv[1], qkv[2]
        scale = Dh ** -0.5
        pos = torch.arange(S)
        off = torch.arange(W) * dil
        idx = pos[:, None] - off[None, :]
        mask = idx >= 0
        idx_c = torch.where(mask, idx, 0).reshape(-1)
        kg = k[:, :, idx_c, :].reshape(B, H, S, W, Dh)
        vg = v[:, :, idx_c, :].reshape(B, H, S, W, Dh)
        logits = torch.einsum("bhsd,bhswd->bhsw", q, kg) * scale
        logits = torch.where(mask[None, None, :, :], logits, -1e9)
        attn = _softmax(logits, axis=-1)
        o = torch.einsum("bhsw,bhswd->bhsd", attn, vg)
        return (lambda x, *d: x.permute(*d))(o, 0, 2, 1, 3).reshape(B, S, D) @ wo

    def _B_ref(x, W_gate, W_up, W_down):
        gate = torch.einsum("bsd,df->bsf", x, W_gate)
        up = torch.einsum("bsd,df->bsf", x, W_up)
        gate = gate * (lambda x, dt: x.to(dt))(gate > 0, gate.dtype)
        h = gate * up
        return torch.einsum("bsf,fd->bsd", h, W_down)

    x = A_x
    xn = _layernorm(x, axis=-1)
    return x + _A_ref(xn, A_wqkv, A_wo) + _B_ref(xn, B_W_gate, B_W_up, B_W_down)
```

```python
import sys

NAME = "parallel_sum__sliding_local_dilated__glu_gated_reglu__prompt"
FL = 0xA00000
WS_BYTES = FL + 0x10000
OOB = 0x7ff00000

class G:
    def __init__(self, diag=False):
        self.L = []
        self.vm_n = 0; self.vm_done = 0
        self.lg_n = 0; self.lg_done = 0
        self.smem = False
        self.diag = diag
        self.nstamp = 0
        self.stamp_names = []
    def e(self, s): self.L.append("    " + s)
    def c(self, s): self.L.append("    ; " + s)
    def label(self, s): self.L.append(s + ":")
    def vm(self, s):
        self.e(s); self.vm_n += 1; return self.vm_n - 1
    def lg(self, s):
        self.e(s); self.lg_n += 1
        assert self.lg_n - self.lg_done <= 64
        return self.lg_n - 1
    def wait(self, vm=None, lg=None):
        parts = []
        if vm is not None and vm >= self.vm_done:
            n = self.vm_n - 1 - vm
            parts.append(f"vmcnt({min(n, 63)})"); self.vm_done = vm + 1
        if lg is not None and lg >= self.lg_done:
            n = self.lg_n - 1 - lg
            if self.smem:
                n = 0; self.smem = False; self.lg_done = self.lg_n
            else:
                self.lg_done = lg + 1
            parts.append(f"lgkmcnt({min(n, 15)})")
        if parts:
            self.e("s_waitcnt " + " ".join(parts)); return 1
        return 0
    def wait_all_lg(self):
        self.e("s_waitcnt lgkmcnt(0)"); self.lg_done = self.lg_n; self.smem = False
    def wait_all_vm(self):
        self.e("s_waitcnt vmcnt(0)"); self.vm_done = self.vm_n
    def stamp(self, name):
        if not self.diag: return
        assert self.nstamp < 12
        r = 76 + 2 * self.nstamp
        self.e(f"s_memtime s[{r}:{r+1}]"); self.smem = True
        self.nstamp += 1; self.stamp_names.append(name)

def RBc(x): return 40960 * x + 128 * (x >> 1)

def gen(diag=False, opt=None):
    o = dict(rotm=4, D=6, opoll_at=20)
    if opt: o.update(opt)
    g = G(diag); e = g.e
    sW, sMT, sSL, sROT, sM2, sNT, sRB, sMASK = 3, 4, 5, 6, 7, 60, 61, 62
    SX, SW1, SQKV, SWD, SWO, SWS, SOUT, SDBG = 8, 12, 16, 20, 24, 28, 32, 36
    sP1 = [40 + i for i in range(8)]
    sP2 = [48 + i for i in range(4)]
    sXO = [64 + i for i in range(8)]
    sT0, sT1, sT2, sT3 = 72, 73, 74, 75
    sHST = 52; sW2D = 53; sW2O = 54; sH0 = 55; sH1 = 56; sO0 = 57; sO1 = 58; sTb = 59; sT4 = 63
    sSPIN = 100; SPIN_MAX = 100000
    def srd(r): return f"s[{r}:{r+3}]"
    XN = 128; PUB = 80; ACCV = 32
    def xn(k): return XN + 4 * k
    vL16 = 0
    vD1 = [1 + i for i in range(7)]
    vT1 = [8, 9]
    vR, vC = 10, 11
    vTmp = [12, 13, 14, 15]
    vHR = [16, 17]
    vDW = [18, 19, 20, 21]
    vCK = 22
    vD2 = [1, 2, 3]
    vT2 = [4, 5, 6, 7]
    vTH = [24, 25, 26, 27]
    vHA = 28
    vA = 23
    PU = [k for k in range(32) if k % 8 in (0, 3, 5)]
    assert len(PU) == 12
    pureg = {k: PUB + 4 * i for i, k in enumerate(PU)}
    def acc1(b):
        return ("v", ACCV + 16 * b) if b < 3 else ("a", 16 * (b - 3))
    def rr(t, r, n): return f"{t}[{r}:{r+n-1}]"
    FR = 64
    HX = 96
    D = o["D"]

    e("s_cmp_ge_u32 s2, 256")
    e("s_cbranch_scc1 L_end")
    g.stamp("start")
    e("s_load_dwordx16 s[40:55], s[0:1], 0")
    e("s_load_dwordx4 s[56:59], s[0:1], 64")
    e("v_lshrrev_b32 v1, 6, v0")
    e("v_and_b32 v23, 63, v0")
    e(f"v_readfirstlane_b32 s{sW}, v1")
    lane = 23
    e(f"s_and_b32 s{sT0}, s2, 7"); e(f"s_lshr_b32 s{sT1}, s2, 3")
    e(f"s_lshr_b32 s{sMT}, s{sT0}, 1"); e(f"s_lshl_b32 s{sMT}, s{sMT}, 2"); e(f"s_and_b32 s{sT2}, s{sT1}, 3"); e(f"s_add_u32 s{sMT}, s{sMT}, s{sT2}")
    e(f"s_and_b32 s{sSL}, s{sT0}, 1"); e(f"s_lshl_b32 s{sSL}, s{sSL}, 3"); e(f"s_lshr_b32 s{sNT}, s{sT1}, 2"); e(f"s_add_u32 s{sSL}, s{sSL}, s{sNT}")
    e(f"s_lshl_b32 s{sM2}, s{sT0}, 2"); e(f"s_add_u32 s{sM2}, s{sM2}, s{sT2}")
    if o["rotm"] == 4:
        e(f"s_and_b32 s{sROT}, s{sMT}, 1"); e(f"s_lshl_b32 s{sROT}, s{sROT}, 2")
    elif o["rotm"] == 2:
        e(f"s_and_b32 s{sROT}, s{sMT}, 3"); e(f"s_lshl_b32 s{sROT}, s{sROT}, 1")
    else:
        e(f"s_mov_b32 s{sROT}, 0")
    e(f"s_add_u32 s{sROT}, s{sROT}, s{sSL}"); e(f"s_and_b32 s{sROT}, s{sROT}, 7")
    e(f"s_mul_i32 s{sRB}, s{sW}, 40960"); e(f"s_lshr_b32 s{sT0}, s{sW}, 1"); e(f"s_lshl_b32 s{sT0}, s{sT0}, 7"); e(f"s_add_u32 s{sRB}, s{sRB}, s{sT0}")
    e(f"s_mov_b32 s{sMASK}, 0xffff0000"); e(f"s_mov_b32 s{sSPIN}, 0")
    e(f"s_lshl_b32 s{sT3}, s{sMT}, 17"); e(f"s_lshl_b32 s{sT0}, s{sW}, 15"); e(f"s_add_u32 s{sT3}, s{sT3}, s{sT0}")
    for s in range(8):
        e(f"s_add_u32 s{sT0}, s{sROT}, {s}"); e(f"s_and_b32 s{sT0}, s{sT0}, 7"); e(f"s_lshl_b32 s{sT0}, s{sT0}, 7"); e(f"s_add_u32 s{sXO[s]}, s{sT3}, s{sT0}")
    e(f"s_lshl_b32 s{sT4}, s{sMT}, 7"); e(f"s_sub_i32 s{sT4}, s{sT4}, 16"); e(f"s_max_i32 s{sT4}, s{sT4}, 0")
    e(f"s_lshl_b32 s{sT0}, s{sW}, 2"); e(f"s_add_u32 s{sT4}, s{sT4}, s{sT0}"); e(f"s_lshl_b32 s{sT4}, s{sT4}, 10")
    vHRAW = 32
    vXD = [48, 49, 50, 51]; vXR = [52, 53, 54, 55]; vHW = [56, 57, 58, 59]
    vS = [60, 61]; vQ = [62, 63]; vHo = 64; vONE = 65
    t0, t1, t2, t3 = 66, 67, 68, 69
    vZ = 72
    e(f"v_lshlrev_b32 v{vL16}, 4, v{lane}")
    e(f"v_lshrrev_b32 v{t0}, 4, v{lane}"); e(f"v_lshlrev_b32 v{vHo}, 10, v{t0}"); e(f"v_and_b32 v{t1}, 15, v{lane}"); e(f"v_lshl_add_u32 v{vHo}, v{t1}, 4, v{vHo}")
    e(f"v_lshrrev_b32 v{t2}, 3, v{lane}"); e(f"v_lshlrev_b32 v{t2}, 10, v{t2}"); e(f"v_and_b32 v{t3}, 7, v{lane}"); e(f"v_xor_b32 v{t3}, v{t3}, v{t0}")
    e(f"v_lshl_add_u32 v{vXD[0]}, v{t3}, 4, v{t2}"); e(f"v_xor_b32 v{vXD[1]}, 64, v{vXD[0]}")
    e(f"v_add_u32 v{vXD[2]}, {2*7168}, v{vXD[0]}"); e(f"v_add_u32 v{vXD[3]}, {3*7168}, v{vXD[1]}"); e(f"v_add_u32 v{vXD[1]}, 7168, v{vXD[1]}")
    e("s_waitcnt lgkmcnt(0)"); g.smem = False
    def mk(r, lo, hi, n):
        e(f"s_mov_b32 s{r}, s{lo}"); e(f"s_mov_b32 s{r+1}, s{hi}"); e(f"s_mov_b32 s{r+2}, {n}"); e(f"s_mov_b32 s{r+3}, 0x20000")
    mk(SX, 40, 41, 2097152)
    hl = []
    for i in range(4):
        hl.append(g.vm(f"buffer_load_dwordx4 v[{vHRAW+4*i}:{vHRAW+4*i+3}], v{vHo}, {srd(SX)}, s{sT4} offen offset:{256*i}"))
    xd = []
    for s in range(8):
        e(f"s_add_u32 m0, s{sRB}, {7168 + 4096*s}")
        if s == 0: e("s_nop 0")
        else: e(f"s_nop 0")
        for i in range(4):
            last = g.vm(f"buffer_load_dwordx4 v{vXD[i]}, {srd(SX)}, s{sXO[s]} offen offset:{1024*i} lds")
        xd.append(last)
    e(f"s_cmp_ge_u32 s{sW}, 2"); e(f"s_cselect_b32 s{SW1}, s50, s48"); e(f"s_cselect_b32 s{SW1+1}, s51, s49")
    e(f"s_mov_b32 s{SW1+2}, 1835008"); e(f"s_mov_b32 s{SW1+3}, 0x20000")
    mk(SQKV, 42, 43, 1572864); mk(SWO, 44, 45, 524288); mk(SWD, 52, 53, 1835008); mk(SOUT, 54, 55, 2097152)
    mk(SDBG, 56, 57, 256); mk(SWS, 58, 59, WS_BYTES)
    e(f"s_and_b32 s{sT1}, s{sW}, 1"); e(f"s_mul_i32 s{sT1}, s{sT1}, {32*3584}"); e(f"s_mul_i32 s{sT2}, s{sSL}, 224"); e(f"s_add_u32 s{sT1}, s{sT1}, s{sT2}")
    for s in range(8):
        e(f"s_add_u32 s{sT0}, s{sROT}, {s}"); e(f"s_and_b32 s{sT0}, s{sT0}, 7"); e(f"s_mul_i32 s{sT0}, s{sT0}, {64*3584}"); e(f"s_add_u32 s{sP1[s]}, s{sT0}, s{sT1}")
    for i in range(7):
        e(f"v_add_u32 v{t0}, {64*i}, v{lane}"); e(f"v_mul_u32_u24 v{t1}, 4682, v{t0}"); e(f"v_lshrrev_b32 v{t1}, 16, v{t1}")
        e(f"v_mul_u32_u24 v{t2}, {3584 - 14*16}, v{t1}"); e(f"v_lshl_add_u32 v{vD1[i]}, v{t0}, 4, v{t2}")
        if i & 3: e(f"v_subrev_u32 v{vD1[i]}, {(i&3)*1024}, v{vD1[i]}")
    for cc in range(448): assert (cc * 4682) >> 16 == cc // 14
    dma = {}
    def dma1(st, emit=None):
        sl = st % 5
        out = [("s", f"s_add_u32 m0, s{sRB}, {7168*sl}")]
        for i in range(7):
            if i == 4: out.append(("s", f"s_add_u32 m0, s{sRB}, {7168*sl + 4096}"))
            out.append(("d", st, f"buffer_load_dwordx4 v{vD1[i]}, {srd(SW1)}, s{sP1[st]} offen offset:{(i&3)*1024} lds"))
        return out
    def dma2(st):
        sl = st % 5; q = st - 8
        out = [("s", f"s_add_u32 m0, s{sRB}, {7168*sl}")]
        for i in range(6):
            if i == 3:
                out.append(("s", f"s_add_u32 m0, s{sRB}, {7168*sl + 3072}")); out.append(("s", f"s_add_u32 s{sP2[q]}, s{sP2[q]}, {16*3072}"))
            out.append(("d", st, f"buffer_load_dwordx4 v{vD2[i%3]}, {srd(SQKV)}, s{sP2[q]} offen offset:{(i%3)*1024} lds"))
        return out
    last_was_m0 = [False]
    def emit_item(it):
        k = it[0]
        if k == "s":
            e(it[1]); last_was_m0[0] = it[1].split()[1].startswith("m0")
        elif k == "d":
            if g.L[-1].strip().startswith("s_add_u32 m0") or g.L[-1].strip().startswith("s_mov_b32 m0"): e("s_nop 0")
            dma[it[1]] = g.vm(it[2])
        elif k == "v": e(it[1])
        elif k == "vm":
            idx = g.vm(it[2]); dma[it[1]] = idx
        elif k == "lg":
            dma[it[1]] = g.lg(it[2])
        elif k == "fn": it[1]()
    def emit_items(items):
        for it in items: emit_item(it)
    emit_items(dma1(0))
    for i in range(4): e(f"v_mov_b32 v{vZ+i}, 0")
    e(f"s_lshl_b32 s{sT0}, s{sMT}, 12"); e(f"s_lshl_b32 s{sT1}, s{sW}, 10"); e(f"s_add_u32 s{sT0}, s{sT0}, s{sT1}"); e(f"s_add_u32 s{sT0}, s{sT0}, {FL}")
    e(f"s_cmp_eq_u32 s{sSL}, 0"); e(f"s_cselect_b32 s{sT0}, s{sT0}, {OOB}")
    e(f"v_add_u32 v{vZ+4}, s{sT0}, v{vL16}")
    clr = g.vm(f"buffer_store_dwordx4 v[{vZ}:{vZ+3}], v{vZ+4}, {srd(SWS)}, 0 offen sc1")
    e(f"s_and_b32 s{sT1}, s{sW}, 1"); e(f"s_mul_i32 s{sT1}, s{sT1}, {32*3072}"); e(f"s_lshl_b32 s{sT2}, s{sSL}, 6"); e(f"s_add_u32 s{sT1}, s{sT1}, s{sT2}")
    e(f"s_lshr_b32 s{sT2}, s{sW}, 1"); e(f"s_add_u32 s{sT2}, s{sT2}, s{sROT}")
    for q in range(4):
        e(f"s_add_u32 s{sT0}, s{sT2}, {2*q}"); e(f"s_and_b32 s{sT0}, s{sT0}, 7"); e(f"s_mul_i32 s{sT0}, s{sT0}, {64*3072}"); e(f"s_add_u32 s{sP2[q]}, s{sT0}, s{sT1}")
    e(f"s_lshl_b32 s{sTb}, s{sMT}, 2"); e(f"s_add_u32 s{sTb}, s{sTb}, s{sW}"); e(f"s_mul_i32 s{sTb}, s{sTb}, {144*1024}")
    e(f"s_mul_i32 s{sT0}, s{sSL}, 7168"); e(f"s_add_u32 s{sHST}, s{sTb}, s{sT0}"); e(f"s_add_u32 s{sHST}, s{sHST}, {32*1024}")
    e(f"s_lshl_b32 s{sT0}, s{sNT}, 7"); e(f"s_mul_i32 s{sW2D}, s{sW}, {448*1024}"); e(f"s_add_u32 s{sW2D}, s{sW2D}, s{sT0}")
    e(f"s_lshl_b32 s{sW2O}, s{sW}, 17"); e(f"s_add_u32 s{sW2O}, s{sW2O}, s{sT0}")
    e(f"v_and_b32 v{t0}, 31, v{lane}"); e(f"v_lshlrev_b32 v{t1}, 7, v{t0}"); e(f"v_add_u32 v{t1}, s{sRB}, v{t1}")
    e(f"v_bfe_u32 v{t2}, v{lane}, 1, 3"); e(f"v_lshrrev_b32 v{t3}, 5, v{lane}"); e(f"v_xor_b32 v{t2}, v{t2}, v{t3}")
    for jj in range(4):
        e(f"v_xor_b32 v{t3}, {2*jj}, v{t2}"); e(f"v_lshl_add_u32 v{vXR[jj]}, v{t3}, 4, v{t1}")
    e(f"v_lshrrev_b32 v{t0}, 5, v{lane}"); e(f"v_lshlrev_b32 v{t0}, 3, v{t0}"); e(f"v_bfe_u32 v{t1}, v{lane}, 2, 2"); e(f"v_add_u32 v{t0}, v{t0}, v{t1}")
    e(f"v_mul_u32_u24 v{t0}, 224, v{t0}"); e(f"v_and_b32 v{t1}, 3, v{lane}"); e(f"v_lshl_add_u32 v{t0}, v{t1}, 3, v{t0}")
    e(f"v_bfe_u32 v{t1}, v{lane}, 4, 1"); e(f"v_mul_u32_u24 v{t1}, {RBc(2)}, v{t1}"); e(f"v_add_u32 v{vT1[0]}, v{t0}, v{t1}"); e(f"v_add_u32 v{vT1[1]}, 40960, v{vT1[0]}")
    e(f"v_lshrrev_b32 v{t0}, 4, v{lane}"); e(f"s_lshl_b32 s{sT0}, s{sW}, 2"); e(f"v_add_u32 v{t1}, s{sT0}, v{t0}"); e(f"v_and_b32 v{t1}, 7, v{t1}")
    e(f"v_lshlrev_b32 v{t0}, 10, v{t0}"); e(f"v_add_u32 v{t0}, s{sRB}, v{t0}")
    e(f"s_lshl_b32 s{sT0}, s{sROT}, 3"); e(f"v_and_b32 v{t2}, 15, v{lane}"); e(f"v_subrev_u32 v{t2}, s{sT0}, v{t2}")
    for i in range(4):
        e(f"v_add_u32 v{t3}, {16*i}, v{t2}"); e(f"v_and_b32 v{t3}, 63, v{t3}"); e(f"v_xor_b32 v{t3}, v{t3}, v{t1}"); e(f"v_lshl_add_u32 v{vHW[i]}, v{t3}, 4, v{t0}")
    e(f"v_bfe_u32 v{t0}, v{lane}, 2, 2"); e(f"v_mul_u32_u24 v{t1}, 40960, v{t0}"); e(f"v_lshrrev_b32 v{t0}, 1, v{t0}"); e(f"v_lshl_add_u32 v{t1}, v{t0}, 7, v{t1}")
    e(f"v_and_b32 v{t0}, 3, v{lane}"); e(f"v_lshl_add_u32 v{t1}, v{t0}, 10, v{t1}")
    e(f"v_lshrrev_b32 v{t0}, 4, v{lane}"); e(f"v_and_b32 v{t2}, 7, v{lane}"); e(f"v_xor_b32 v{t0}, v{t0}, v{t2}")
    e(f"v_lshl_add_u32 v{vHR[0]}, v{t0}, 4, v{t1}"); e(f"v_xor_b32 v{vHR[1]}, 64, v{vHR[0]}")
    e(f"v_lshrrev_b32 v{t0}, 3, v{lane}"); e(f"v_lshlrev_b32 v{t0}, 10, v{t0}"); e(f"v_bfe_u32 v{t1}, v{lane}, 4, 1"); e(f"v_lshlrev_b32 v{t1}, 2, v{t1}")
    e(f"v_and_b32 v{t2}, 7, v{lane}"); e(f"v_xor_b32 v{t1}, v{t1}, v{t2}"); e(f"v_lshl_add_u32 v{vDW[0]}, v{t1}, 4, v{t0}")
    for i in range(1, 4): e(f"v_add_u32 v{vDW[i]}, {7168*i}, v{vDW[0]}")
    e(f"v_mov_b32 v{vONE}, 0x3f803f80")

    def ln_scalars(vs, vq, r, c, ta, tb):
        e(f"v_mul_f32 v{vs}, 0x3b000000, v{vs}")
        e(f"v_mul_f32 v{vq}, 0x3b000000, v{vq}")
        e(f"v_fma_f32 v{vq}, -v{vs}, v{vs}, v{vq}")
        e(f"v_max_f32 v{vq}, 0, v{vq}")
        e(f"v_cvt_pk_bf16_f32 v{ta}, v{vs}, v{vq}")
        e(f"v_and_b32 v{tb}, s{sMASK}, v{ta}")
        e(f"v_lshlrev_b32 v{ta}, 16, v{ta}")
        e(f"v_add_f32 v{tb}, 0x3727c5ac, v{tb}")
        e(f"v_cvt_pk_bf16_f32 v{tb}, v{tb}, v{tb}")
        e(f"v_and_b32 v{tb}, s{sMASK}, v{tb}")
        e(f"v_sqrt_f32 v{tb}, v{tb}")
        e("s_nop 0")
        e(f"v_cvt_pk_bf16_f32 v{tb}, v{tb}, v{tb}")
        e(f"v_and_b32 v{tb}, s{sMASK}, v{tb}")
        e(f"v_rcp_f32 v{r}, v{tb}")
        e("s_nop 0")
        e(f"v_mul_f32 v{c}, v{ta}, v{r}")
        e(f"v_sub_f32 v{c}, 0, v{c}")

    g.wait(vm=hl[3])
    for i in range(16):
        d = vHRAW + i
        e(f"v_dot2_f32_bf16 v{vS[i&1]}, v{d}, v{vONE}, {'0' if i < 2 else 'v%d' % vS[i&1]}")
        e(f"v_dot2_f32_bf16 v{vQ[i&1]}, v{d}, v{d}, {'0' if i < 2 else 'v%d' % vQ[i&1]}")
    e("s_nop 2")
    e(f"v_add_f32 v{vS[0]}, v{vS[0]}, v{vS[1]}"); e(f"v_add_f32 v{vQ[0]}, v{vQ[0]}, v{vQ[1]}")
    for sh in (8, 4, 2, 1):
        e("s_nop 0")
        e(f"v_add_f32_dpp v{vS[0]}, v{vS[0]}, v{vS[0]} row_ror:{sh} row_mask:0xf bank_mask:0xf")
        e("s_nop 0")
        e(f"v_add_f32_dpp v{vQ[0]}, v{vQ[0]}, v{vQ[0]} row_ror:{sh} row_mask:0xf bank_mask:0xf")
    hr, hc = 70, 71
    ln_scalars(vS[0], vQ[0], hr, hc, t0, t1)
    def norm_dword(d, r, c, ta, tb):
        return [f"v_lshlrev_b32 v{ta}, 16, v{d}", f"v_and_b32 v{tb}, s{sMASK}, v{d}", f"v_fma_f32 v{ta}, v{ta}, v{r}, v{c}",
                f"v_fma_f32 v{tb}, v{tb}, v{r}, v{c}", f"v_cvt_pk_bf16_f32 v{d}, v{ta}, v{tb}"]
    for i in range(16):
        for s_ in norm_dword(vHRAW + i, hr, hc, t0 + 2 * (i & 1), t1 + 2 * (i & 1)): e(s_)
    g.stamp("halo_ln")
    first = True
    rd = {}
    def xread(s):
        g.wait(vm=xd[s])
        for jj in range(4):
            k = 4 * s + jj
            rd[k] = g.lg(f"ds_read_b128 v[{xn(k)}:{xn(k)+3}], v{vXR[jj]} offset:{7168 + 4096*s}")
    def xstats(s):
        for jj in range(4):
            k = 4 * s + jj
            g.wait(lg=rd[k])
            for i in range(4):
                d = xn(k) + i
                z = (k == 0 and i < 2)
                e(f"v_dot2_f32_bf16 v{vS[i&1]}, v{d}, v{vONE}, {'0' if z else 'v%d' % vS[i&1]}")
                e(f"v_dot2_f32_bf16 v{vQ[i&1]}, v{d}, v{d}, {'0' if z else 'v%d' % vQ[i&1]}")
            if k in pureg:
                for i in range(4): e(f"v_lshlrev_b32 v{pureg[k]+i}, 16, v{xn(k)+i}")
                for i in range(4): e(f"v_and_b32 v{xn(k)+i}, s{sMASK}, v{xn(k)+i}")
    xread(0)
    after = {1: 1, 3: 2, 5: 3, 6: 4}
    for s in range(8):
        if s + 1 < 8: xread(s + 1)
        if s == 7:
            g.wait(lg=rd[31])
            for i in range(4):
                hw = g.lg(f"ds_write_b128 v{vHW[i]}, v[{vHRAW+4*i}:{vHRAW+4*i+3}] offset:35840")
        xstats(s)
        if s in after: emit_items(dma1(after[s]))
    g.stamp("x_done")
    e("s_nop 2")
    e(f"v_add_f32 v{vS[0]}, v{vS[0]}, v{vS[1]}"); e(f"v_add_f32 v{vQ[0]}, v{vQ[0]}, v{vQ[1]}")
    e(f"v_mov_b32 v{vS[1]}, v{vS[0]}"); e(f"v_mov_b32 v{vQ[1]}, v{vQ[0]}")
    g.wait(vm=max(clr, dma[0]), lg=hw)
    e("s_barrier")
    e(f"v_permlane32_swap_b32 v{vS[0]}, v{vS[1]}"); e(f"v_permlane32_swap_b32 v{vQ[0]}, v{vQ[1]}")

    frags = []
    for m in range(224):
        st, jj, b = m // 28, (m % 28) // 7, m % 7
        base = 7168 * (st % 5) + (16 * (jj & 1)) * 224 + b * 32
        frags.append(dict(st=st, addr=vT1[jj >> 1], o0=base, o1=base + 4 * 224, kind="p1", k=4 * st + jj, b=b))
    for q in range(4):
        st = 8 + q
        for jj in range(8):
            for b in range(3):
                base = 7168 * (st % 5) + (16 * (jj & 1)) * 192 + b * 64
                frags.append(dict(st=st, addr=vT2[jj >> 1], o0=base, o1=base + 4 * 192, kind="p2", k=8 * q + jj, b=b))
            if jj & 1:
                base = 7168 * (st % 5)
                frags.append(dict(st=st, addr=vTH[jj >> 1], o0=base, o1=base + 4 * 192, kind="h", k=4 * q + (jj >> 1), b=0))
    NF = len(frags)
    frd = {}
    def issue_frag(i):
        f = frags[i]; n = 0
        if i > 0 and frags[i - 1]["st"] != f["st"]:
            assert not any(it[0] == "d" and it[1] == f["st"] for it in memq), f["st"]
            n += g.wait(vm=dma[f["st"]]); e("s_barrier"); n += 1
            on_barrier(f["st"] - 1)
        r = FR + 4 * (i % 8)
        g.lg(f"ds_read_b64_tr_b16 a[{r}:{r+1}], v{f['addr']} offset:{f['o0']}")
        frd[i] = g.lg(f"ds_read_b64_tr_b16 a[{r+2}:{r+3}], v{f['addr']} offset:{f['o1']}")
        return n + 2
    hiq = []
    loq = []
    memq = []
    cur = [0]
    def add_hi(items, deadline):
        n = len(items); t0_ = cur[0]
        new = [(t0_ + (deadline - t0_) * (j + 1) // n, it) for j, it in enumerate(items)]
        merged = []; a = b = 0
        while a < len(hiq) or b < len(new):
            if b >= len(new) or (a < len(hiq) and hiq[a][0] <= new[b][0]): merged.append(hiq[a]); a += 1
            else: merged.append(new[b]); b += 1
        hiq[:] = merged
    W2U = [35840, 37888] + [21504 + 2048 * i for i in range(7)] + [2048 * i for i in range(7)]
    def w2dma(ks_list):
        out = []; i = 0
        while i < len(ks_list):
            ks = ks_list[i]; u = W2U[ks % 16]
            pair = (i + 1 < len(ks_list) and ks_list[i+1] == ks + 1 and W2U[(ks+1) % 16] == u + 2048 and (ks + 1 < 28 or ks >= 28))
            n = 4 if pair else 2
            if ks < 28: sr, so, row = SWD, sW2D, 16 * ks
            else: sr, so, row = SWO, sW2O, 16 * (ks - 28)
            out.append(("s", f"s_add_u32 m0, s{sRB}, {u}"))
            out.append(("s", f"s_add_u32 s{sT4}, s{so}, {row*1024}"))
            for j in range(n):
                out.append(("d", ("w2", ks + (j >> 1)), f"buffer_load_dwordx4 v{vDW[j]}, {srd(sr)}, s{sT4} offen offset:{1024*j} lds"))
            i += 2 if pair else 1
        return out
    def on_barrier(s):
        nx = s + 4
        if 5 <= nx <= 7: memq.extend(dma1(nx))
        elif 8 <= nx <= 11: memq.extend(dma2(nx))
        if s == 0:
            for j in range(16):
                loq.append(("lg", ("hx", j), f"ds_read_b128 a[{HX+4*j}:{HX+4*j+3}], v{vHR[j&1]} offset:{35840 + 128*(j>>1)}"))
        if s == 2:
            memq.append(("s", f"s_lshl_b32 s{sT0}, s{sMT}, 2"))
            memq.append(("vm", "dbgchk", f"buffer_load_dword v{vCK}, off, {srd(SDBG)}, s{sT0} sc1"))
        if s == 3:
            its = []
            for i in range(3):
                its += [f"v_add_u32 v{vTmp2[0]}, {64*i}, v{lane}", f"v_mul_u32_u24 v{vTmp2[1]}, 5462, v{vTmp2[0]}", f"v_lshrrev_b32 v{vTmp2[1]}, 16, v{vTmp2[1]}",
                        f"v_mul_u32_u24 v{vD2[i]}, 12, v{vTmp2[1]}", f"v_sub_u32 v{vTmp2[0]}, v{vTmp2[0]}, v{vD2[i]}",
                        f"v_mul_u32_u24 v{vD2[i]}, 3072, v{vTmp2[1]}", f"v_lshrrev_b32 v{vTmp2[1]}, 2, v{vTmp2[0]}", f"v_lshl_add_u32 v{vD2[i]}, v{vTmp2[1]}, 10, v{vD2[i]}",
                        f"v_and_b32 v{vTmp2[0]}, 3, v{vTmp2[0]}", f"v_lshl_add_u32 v{vD2[i]}, v{vTmp2[0]}, 4, v{vD2[i]}"]
                if i: its.append(f"v_subrev_u32 v{vD2[i]}, {1024*i}, v{vD2[i]}")
            memq.append(("fn", lambda: add_hi([("v", x) for x in its] + [("fn", lambda: done.add("vD2"))], 28 * 5 - D - 2)))
        if s == 4:
            assert "vD2" in done
            a, b = vTmp2
            its = [f"v_lshrrev_b32 v{a}, 5, v{lane}", f"v_lshlrev_b32 v{a}, 3, v{a}", f"v_bfe_u32 v{b}, v{lane}, 2, 2", f"v_add_u32 v{a}, v{a}, v{b}",
                   f"v_mul_u32_u24 v{a}, 192, v{a}", f"v_and_b32 v{b}, 3, v{lane}", f"v_lshl_add_u32 v{a}, v{b}, 3, v{a}",
                   f"v_bfe_u32 v{b}, v{lane}, 4, 1", f"v_lshl_add_u32 v{vT2[0]}, v{b}, 5, v{a}"]
            its += [f"v_add_u32 v{vT2[r]}, {RBc(r)}, v{vT2[0]}" for r in (1, 2, 3)]
            its += [f"v_lshrrev_b32 v{a}, 4, v{lane}", f"v_lshlrev_b32 v{a}, 3, v{a}", f"v_bfe_u32 v{b}, v{lane}, 2, 2", f"v_add_u32 v{a}, v{a}, v{b}",
                    f"v_mul_u32_u24 v{a}, 192, v{a}", f"v_and_b32 v{b}, 3, v{lane}", f"v_lshl_add_u32 v{a}, v{b}, 3, v{a}",
                    f"s_lshl_b32 s{sT1}, s{sW}, 5", f"s_add_u32 s{sT1}, s{sT1}, 64", f"v_add_u32 v{vTH[0]}, s{sT1}, v{a}"]
            its += [f"v_add_u32 v{vTH[r]}, {RBc(r)}, v{vTH[0]}" for r in (1, 2, 3)]
            add_hi([("v", x) for x in its] + [("fn", lambda: done.add("vT2"))], 28 * 8 - D - 2)
            memq.extend(w2dma([0, 1]))
        if s == 5:
            def chk():
                g.wait(vm=dma["dbgchk"])
                e(f"v_readfirstlane_b32 s{sT0}, v{vCK}")
                e(f"s_cmp_lg_u32 s{sT0}, 0")
                e("s_cbranch_scc0 L_dbgspin")
                g.label("L_dbgok")
            add_hi([("fn", chk)], 28 * 7)
        if s == 7: assert "vT2" in done
        if s == 9: memq.extend(w2dma([2, 3, 4]))
        if s == 10: memq.extend(w2dma([5, 6, 7, 8]))
    done = set()
    vTmp2 = (vHA, vHA + 1)
    for cc in range(192): assert (cc * 5462) >> 16 == cc // 12

    def ln_items(k):
        out = []
        if k in pureg:
            for i in range(4):
                lo, d = pureg[k] + i, xn(k) + i
                out += [f"v_fma_f32 v{lo}, v{lo}, v{vR}, v{vC}", f"v_fma_f32 v{d}, v{d}, v{vR}, v{vC}"]
            for i in range(4): out.append(f"v_cvt_pk_bf16_f32 v{xn(k)+i}, v{pureg[k]+i}, v{xn(k)+i}")
        else:
            for i in range(4): out += norm_dword(xn(k) + i, vR, vC, vTmp[2 * (i & 1)], vTmp[2 * (i & 1) + 1])
        return out
    for i in range(D): issue_frag(i)
    e(f"v_add_f32 v{vS[0]}, v{vS[0]}, v{vS[1]}"); e(f"v_add_f32 v{vQ[0]}, v{vQ[0]}, v{vQ[1]}")
    ln_scalars(vS[0], vQ[0], vR, vC, t0, t1)
    for s_ in ln_items(0): e(s_)
    e(f"s_lshl_b32 s{sT0}, s{sMT}, 2"); e(f"s_or_b32 s{sT1}, s{sSL}, s{sW}"); e(f"s_cmp_eq_u32 s{sT1}, 0"); e(f"s_cselect_b32 s{sT0}, s{sT0}, 0x1000")
    e(f"v_mov_b32 v{vTmp[0]}, 1"); e(f"v_lshlrev_b32 v{vTmp[1]}, 12, v{lane}"); e(f"v_add_u32 v{vTmp[1]}, s{sT0}, v{vTmp[1]}")
    g.vm(f"buffer_store_dword v{vTmp[0]}, v{vTmp[1]}, {srd(SDBG)}, 0 offen sc1")
    g.stamp("mfma_start")
    for k in range(1, 32):
        its_ = ln_items(k)
        for j_, x in enumerate(its_): hiq.append((7 * (k - 1) + (6 * (j_ + 1) - 1) // len(its_), ("v", x)))

    hst = []
    def epi_items(b):
        t, r = acc1(b); out = []
        if t == "a":
            base = ACCV + 16 * ((b - 3) % 3)
            for i in range(16): out.append(("v", f"v_accvgpr_read_b32 v{base+i}, a{r+i}"))
            r = base
        for i in range(8): out.append(("v", f"v_max_f32 v{r+i}, 0, v{r+i}"))
        for i in range(8): out.append(("v", f"v_mul_f32 v{r+i}, v{r+i}, v{r+8+i}"))
        for i in range(4): out.append(("v", f"v_cvt_pk_bf16_f32 v{r+8+i}, v{r+2*i}, v{r+2*i+1}"))
        if b == 4: out.append(("s", f"s_add_u32 s{sHST}, s{sHST}, 4096"))
        out.append(("vm", ("hst", b), f"buffer_store_dwordx4 v[{r+8}:{r+11}], v{vL16}, {srd(SWS)}, s{sHST} offen offset:{(b&3)*1024} sc1"))
        return out
    QA = PUB
    for i in range(NF):
        f = frags[i]
        used = 2; cur[0] = i
        used += g.wait(lg=frd[min(i + 1, NF - 1)] if (i % 2 == 0) else frd[i])
        fr = f"a[{FR + 4*(i%8)}:{FR + 4*(i%8) + 3}]"
        if f["kind"] == "p1":
            t, r = acc1(f["b"]); dst = rr(t, r, 16)
            e(f"v_mfma_f32_32x32x16_bf16 {dst}, {fr}, v[{xn(f['k'])}:{xn(f['k'])+3}], {dst if f['k'] else '0'}")
            cap = 8
        elif f["kind"] == "p2":
            dst = rr("v", QA + 16 * f["b"], 16)
            e(f"v_mfma_f32_32x32x16_bf16 {dst}, {fr}, v[{xn(f['k'])}:{xn(f['k'])+3}], {dst if f['k'] else '0'}")
            cap = 8
        else:
            if f["k"] == 0: g.wait(lg=dma[("hx", 15)])
            dst = rr("v", vHA, 4)
            e(f"v_mfma_f32_16x16x32_bf16 {dst}, {fr}, a[{HX+4*f['k']}:{HX+4*f['k']+3}], {dst if f['k'] else '0'}")
            cap = 4
        if i + D < NF: used += issue_frag(i + D)
        if i == 224 + 2:
            for b in range(7): loq.extend(epi_items(b))
        if i == 223: g.stamp("pass1_end")
        nd = 0
        while memq and used < cap + 1 and nd < 1:
            it = memq.pop(0); emit_item(it)
            if it[0] != "fn": used += 1
            if it[0] in ("d", "vm"): nd += 1
        while loq and loq[0][0] == "lg" and used < cap and (g.lg_n - g.lg_done) < 15:
            emit_item(loq.pop(0)); used += 1
            break
        while hiq and (used < cap or hiq[0][0] <= i):
            it = hiq.pop(0)[1]; emit_item(it)
            if it[0] != "fn": used += 1
        while loq and used < cap and loq[0][0] != "lg":
            it = loq.pop(0); emit_item(it)
            if it[0] != "fn": used += 1
    assert not hiq
    while memq: emit_item(memq.pop(0))
    while loq: emit_item(loq.pop(0))
    g.stamp("pass2_end")

    Q, K, V = QA, QA + 16, QA + 32
    KVO = 14336
    a0, a1, a2, a3 = 1, 2, 3, 4
    vKW, vVW, vVW2, vKR, vVR, vVR2, vHWa = 5, 6, 7, 8, 9, 10, 11
    vTW = [12, 13]; vFl = 14; vXo = 15
    e(f"v_and_b32 v{a0}, 31, v{lane}"); e(f"v_lshrrev_b32 v{a1}, 5, v{lane}")
    e(f"s_lshl_b32 s{sT0}, s{sW}, 5"); e(f"v_add_u32 v{a2}, s{sT0}, v{a0}"); e(f"v_lshlrev_b32 v{a2}, 4, v{a2}")
    e(f"v_mul_u32_u24 v{a3}, {RBc(2)}, v{a1}"); e(f"v_add_u32 v{a3}, v{a3}, v{a2}"); e(f"v_add_u32 v{vKW}, {KVO + 4608 + 256}, v{a3}")
    e(f"v_add_u32 v{vKR}, {KVO + 4608 + 32}, v{a3}")
    e(f"v_mul_u32_u24 v{a3}, 40960, v{a1}"); e(f"v_add_u32 v{a3}, v{a3}, v{a2}"); e(f"v_add_u32 v{vVW}, {KVO + 256}, v{a3}"); e(f"v_add_u32 v{vVW2}, {RBc(2)}, v{vVW}")
    e(f"v_mul_u32_u24 v{a3}, 2304, v{a1}"); e(f"v_add_u32 v{a3}, v{a3}, v{a2}"); e(f"v_add_u32 v{vVR}, {KVO + 32}, v{a3}"); e(f"v_add_u32 v{vVR2}, {RBc(2)}, v{vVR}")
    V_W = []
    for j, (rg, off) in enumerate([(vVW, 0), (vVW2, 0), (vVW, 2304), (vVW2, 2304)]):
        g.lg(f"ds_write_b128 v{rg}, v[{V+4*j}:{V+4*j+3}] offset:{off}")
    for j in range(8): e(f"v_cvt_pk_bf16_f32 v{K+j}, v{K+2*j}, v{K+2*j+1}")
    for j in range(8): e(f"v_cvt_pk_bf16_f32 v{Q+j}, v{Q+2*j}, v{Q+2*j+1}")
    for j in range(4): e(f"v_permlane32_swap_b32 v{K+j}, v{K+4+j}")
    for j in range(4): e(f"v_permlane32_swap_b32 v{Q+j}, v{Q+4+j}")
    g.lg(f"ds_write_b128 v{vKW}, v[{K}:{K+3}]")
    g.lg(f"ds_write_b128 v{vKW}, v[{K+4}:{K+7}] offset:40960")
    e(f"v_and_b32 v{a0}, 15, v{lane}"); e(f"v_lshlrev_b32 v{a0}, 4, v{a0}"); e(f"v_lshrrev_b32 v{a1}, 4, v{lane}")
    e(f"s_cmp_ge_u32 s{sW}, 2"); e("s_cbranch_scc1 L_halo_v")
    e(f"v_and_b32 v{a2}, 1, v{a1}"); e(f"v_mul_u32_u24 v{a2}, 40960, v{a2}"); e(f"v_lshrrev_b32 v{a1}, 1, v{a1}"); e(f"v_lshl_add_u32 v{a2}, v{a1}, 3, v{a2}")
    e(f"s_mul_i32 s{sT0}, s{sW}, {RBc(2)}"); e(f"v_add3_u32 v{vHWa}, v{a2}, v{a0}, s{sT0}")
    e(f"v_cvt_pk_bf16_f32 v{vHA}, v{vHA}, v{vHA+1}"); e(f"v_cvt_pk_bf16_f32 v{vHA+1}, v{vHA+2}, v{vHA+3}")
    e(f"ds_write_b64 v{vHWa}, v[{vHA}:{vHA+1}] offset:{KVO + 4608}")
    e("s_branch L_halo_done")
    g.label("L_halo_v")
    e(f"v_mul_u32_u24 v{a2}, 40960, v{a1}"); e(f"v_lshrrev_b32 v{a1}, 1, v{a1}"); e(f"v_lshl_add_u32 v{a2}, v{a1}, 7, v{a2}")
    e(f"s_and_b32 s{sT0}, s{sW}, 1"); e(f"s_mul_i32 s{sT0}, s{sT0}, 2304"); e(f"v_add3_u32 v{vHWa}, v{a2}, v{a0}, s{sT0}")
    g.lg(f"ds_write_b128 v{vHWa}, v[{vHA}:{vHA+3}] offset:{KVO}")
    g.label("L_halo_done")
    e(f"s_lshl_b32 s{sT0}, s{sMT}, 1"); e(f"s_lshr_b32 s{sT1}, s{sW}, 1"); e(f"s_add_u32 s{sT0}, s{sT0}, s{sT1}"); e(f"s_lshl_b32 s{sT0}, s{sT0}, 11")
    e(f"s_lshl_b32 s{sT1}, s{sSL}, 3"); e(f"s_add_u32 s{sT0}, s{sT0}, s{sT1}"); e(f"s_and_b32 s{sT1}, s{sW}, 1"); e(f"s_lshl_b32 s{sT1}, s{sT1}, 2")
    e(f"s_add_u32 s{sT0}, s{sT0}, s{sT1}"); e(f"s_add_u32 s{sT0}, s{sT0}, {FL}")
    e(f"v_lshlrev_b32 v{vFl}, 8, v{lane}"); e(f"v_add_u32 v{vFl}, s{sT0}, v{vFl}")
    e(f"v_cmp_gt_u32 vcc, 8, v{lane}"); e(f"v_mov_b32 v{a0}, {OOB}"); e(f"v_mov_b32 v{a1}, 1"); e(f"v_cndmask_b32 v{vFl}, v{a0}, v{vFl}, vcc")
    g.wait(vm=dma[("hst", 6)])
    g.vm(f"buffer_store_dword v{a1}, v{vFl}, {srd(SWS)}, 0 offen sc1")
    g.stamp("hflag")
    b0, b1 = 16, 17
    e(f"v_lshrrev_b32 v{b0}, 5, v{lane}"); e(f"v_lshlrev_b32 v{b0}, 2, v{b0}"); e(f"v_bfe_u32 v{b1}, v{lane}, 2, 2"); e(f"v_add_u32 v{b0}, v{b0}, v{b1}"); e(f"v_lshlrev_b32 v{b0}, 7, v{b0}")
    e(f"v_add_u32 v{b0}, s{sRB}, v{b0}"); e(f"v_and_b32 v{b1}, 1, v{lane}"); e(f"v_lshl_add_u32 v{b0}, v{b1}, 3, v{b0}")
    e(f"v_bfe_u32 v{b1}, v{lane}, 4, 1"); e(f"v_lshl_add_u32 v{b0}, v{b1}, 5, v{b0}"); e(f"v_bfe_u32 v{b1}, v{lane}, 1, 1"); e(f"v_lshl_add_u32 v{b0}, v{b1}, 4, v{b0}")
    e(f"v_bfe_u32 v{b1}, v{lane}, 3, 1"); e(f"s_and_b32 s{sT0}, s{sW}, 1"); e(f"v_xor_b32 v{b1}, s{sT0}, v{b1}"); e(f"v_lshl_add_u32 v{vTW[0]}, v{b1}, 6, v{b0}")
    e(f"v_xor_b32 v{b1}, 1, v{b1}"); e(f"v_lshl_add_u32 v{vTW[1]}, v{b1}, 6, v{b0}")
    e(f"v_and_b32 v{b0}, 31, v{lane}"); e(f"v_lshlrev_b32 v{b0}, 10, v{b0}"); e(f"v_lshrrev_b32 v{b1}, 5, v{lane}"); e(f"v_lshl_add_u32 v{vXo}, v{b1}, 3, v{b0}")
    sXR = sXO[0]
    e(f"s_lshl_b32 s{sXR}, s{sM2}, 16"); e(f"s_lshr_b32 s{sT0}, s{sW}, 1"); e(f"s_lshl_b32 s{sT0}, s{sT0}, 15"); e(f"s_add_u32 s{sXR}, s{sXR}, s{sT0}")
    e(f"s_lshl_b32 s{sT0}, s{sNT}, 7"); e(f"s_add_u32 s{sXR}, s{sXR}, s{sT0}"); e(f"s_and_b32 s{sT0}, s{sW}, 1"); e(f"s_lshl_b32 s{sT0}, s{sT0}, 6"); e(f"s_add_u32 s{sXR}, s{sXR}, s{sT0}")
    g.wait_all_lg()
    e("s_barrier")
    g.stamp("attn_bar")
    KB = 128; VB = 192
    kr = {}
    for w in range(8):
        for p in range(2):
            kr[(w, p)] = g.lg(f"ds_read_b128 v[{KB+8*w+4*p}:{KB+8*w+4*p+3}], v{vKR} offset:{(14-2*w)*16 + 40960*p}")
            if g.lg_n - g.lg_done >= 15: g.wait(lg=g.lg_done)
    XR = 24
    xr = [g.vm(f"buffer_load_dwordx2 v[{XR+2*q}:{XR+2*q+1}], v{vXo}, {srd(SX)}, s{sXR} offen offset:{16*q}") for q in range(4)]
    emit_items(w2dma([9, 10, 11, 12, 13, 14, 15]))
    LG = 32
    for w2 in range(0, 8, 2):
        g.wait(lg=kr[(w2 + 1, 1)])
        for j in range(8):
            for w in (w2, w2 + 1):
                e(f"v_dot2_f32_bf16 v{LG+w}, v{Q+j}, v{KB+8*w+j}, {'0' if j == 0 else 'v%d' % (LG+w)}")
    vr = {}
    def vread(w):
        for dq in range(4):
            r = VB + 16 * (w & 3) + 4 * dq
            if g.lg_n - g.lg_done >= 15: g.wait(lg=g.lg_done)
            vr[(w, dq)] = g.lg(f"ds_read_b128 v[{r}:{r+3}], v{vVR if dq < 2 else vVR2} offset:{(14-2*w)*16 + 40960*(dq&1)}")
    for w in range(3): vread(w)
    e(f"s_lshl_b32 s{sT0}, s{sMT}, 7"); e(f"s_lshl_b32 s{sT1}, s{sW}, 5"); e(f"s_add_u32 s{sT0}, s{sT0}, s{sT1}")
    e(f"v_and_b32 v{a0}, 31, v{lane}"); e(f"v_add_u32 v{a0}, s{sT0}, v{a0}"); e(f"v_mov_b32 v{a1}, 0xcf6e6b28")
    sMK = [None] + [f"s[{38+2*j}:{39+2*j}]" for j in range(1, 7)] + ["vcc"]
    for w in range(7, 0, -1): e(f"v_cmp_le_u32 {sMK[w]}, {2*w}, v{a0}")
    for w in range(7, 0, -1): e(f"v_cndmask_b32 v{LG+w}, v{a1}, v{LG+w}, {sMK[w]}")
    e(f"v_max3_f32 v{a2}, v{LG}, v{LG+1}, v{LG+2}"); e(f"v_max3_f32 v{a3}, v{LG+3}, v{LG+4}, v{LG+5}")
    e(f"v_max3_f32 v{a2}, v{a2}, v{LG+6}, v{LG+7}"); e(f"v_max_f32 v{a2}, v{a2}, v{a3}")
    e(f"s_mov_b32 s{sT0}, 0x3eb8aa3b")
    for w in range(8): e(f"v_sub_f32 v{LG+w}, v{LG+w}, v{a2}")
    for w in range(8): e(f"v_mul_f32 v{LG+w}, s{sT0}, v{LG+w}")
    for w in range(8): e(f"v_exp_f32 v{LG+w}, v{LG+w}")
    vread(3)
    SM = 40
    e(f"v_pk_add_f32 v[{SM}:{SM+1}], v[{LG}:{LG+1}], v[{LG+2}:{LG+3}]"); e(f"v_pk_add_f32 v[{SM+2}:{SM+3}], v[{LG+4}:{LG+5}], v[{LG+6}:{LG+7}]")
    e(f"v_pk_add_f32 v[{SM}:{SM+1}], v[{SM}:{SM+1}], v[{SM+2}:{SM+3}]"); e(f"v_add_f32 v{SM}, v{SM}, v{SM+1}")
    e(f"v_rcp_f32 v{SM}, v{SM}"); e("s_nop 0")
    for j in range(4): e(f"v_pk_mul_f32 v[{LG+2*j}:{LG+2*j+1}], v[{LG+2*j}:{LG+2*j+1}], v[{SM}:{SM+1}] op_sel_hi:[1,0]")
    O = 48
    W2R = 128
    w2rd = {}
    def w2toreg(ks):
        g.wait(vm=dma[("w2", ks)])
        for nb in range(2):
            r = W2R + 8 * ks + 4 * nb
            for sec in range(2):
                if g.lg_n - g.lg_done >= 15: g.wait(lg=g.lg_done)
                w2rd[ks] = g.lg(f"ds_read_b64_tr_b16 a[{r+2*sec}:{r+2*sec+1}], v{vTW[nb]} offset:{W2U[ks%16] + 1024*sec}")
    for w in range(8):
        g.wait(lg=vr[(w, 3)])
        pw = LG + (w & ~1); sel = w & 1
        for j in range(8):
            r = VB + 16 * (w & 3) + 2 * j
            if w == 0: e(f"v_pk_mul_f32 v[{O+2*j}:{O+2*j+1}], v[{r}:{r+1}], v[{pw}:{pw+1}] op_sel:[0,{sel}] op_sel_hi:[1,{sel}]")
            else: e(f"v_pk_fma_f32 v[{O+2*j}:{O+2*j+1}], v[{r}:{r+1}], v[{pw}:{pw+1}], v[{O+2*j}:{O+2*j+1}] op_sel:[0,{sel},0] op_sel_hi:[1,{sel},1]")
        if w + 4 < 8: vread(w + 4)
    OP = 64
    dst = {0: 0, 1: 1, 4: 2, 5: 3, 2: 4, 3: 5, 6: 6, 7: 7}
    for p in range(8): e(f"v_cvt_pk_bf16_f32 v{OP+dst[p]}, v{O+2*p}, v{O+2*p+1}")
    e(f"s_lshl_b32 s{sT0}, s{sSL}, 11"); e(f"s_add_u32 s{sT0}, s{sT0}, s{sTb}")
    for j in range(4): e(f"v_permlane32_swap_b32 v{OP+j}, v{OP+4+j}")
    g.vm(f"buffer_store_dwordx4 v[{OP}:{OP+3}], v{vL16}, {srd(SWS)}, s{sT0} offen sc1")
    ost = g.vm(f"buffer_store_dwordx4 v[{OP+4}:{OP+7}], v{vL16}, {srd(SWS)}, s{sT0} offen offset:1024 sc1")
    g.stamp("attn_end")
    vPo = 16; vPd = 17
    e(f"s_lshl_b32 s{sT0}, s{sM2}, 3"); e(f"s_add_u32 s{sT0}, s{sT0}, s{sNT}"); e(f"s_lshl_b32 s{sT0}, s{sT0}, 8"); e(f"s_lshl_b32 s{sT1}, s{sW}, 5")
    e(f"s_add_u32 s{sT0}, s{sT0}, s{sT1}"); e(f"s_add_u32 s{sT0}, s{sT0}, {FL}")
    e(f"v_and_b32 v{vPo}, 7, v{lane}"); e(f"v_lshlrev_b32 v{vPo}, 2, v{vPo}"); e(f"v_add_u32 v{vPo}, s{sT0}, v{vPo}")
    for ks in range(9): w2toreg(ks)
    g.wait(lg=w2rd[8])
    emit_items(w2dma(list(range(16, 25))))
    hp = g.vm(f"buffer_load_dword v{vPd}, v{vPo}, {srd(SWS)}, 0 offen sc1")
    for ks in range(9, 16): w2toreg(ks)
    e(f"s_lshl_b32 s{sT0}, s{sM2}, 1"); e(f"s_lshr_b32 s{sT1}, s{sW}, 1"); e(f"s_add_u32 s{sT2}, s{sT0}, s{sT1}"); e(f"s_xor_b32 s{sT3}, s{sT2}, 1")
    e(f"s_mul_i32 s{sT2}, s{sT2}, {144*1024}"); e(f"s_mul_i32 s{sT3}, s{sT3}, {144*1024}")
    e(f"s_mul_i32 s{sT0}, s{sW}, {28*1024}"); e(f"s_add_u32 s{sT0}, s{sT0}, {32*1024}"); e(f"s_add_u32 s{sH0}, s{sT2}, s{sT0}"); e(f"s_add_u32 s{sH1}, s{sT3}, s{sT0}")
    e(f"s_lshl_b32 s{sT0}, s{sW}, 13"); e(f"s_add_u32 s{sO0}, s{sT2}, s{sT0}"); e(f"s_add_u32 s{sO1}, s{sT3}, s{sT0}")
    g.wait(lg=w2rd[15])
    emit_items(w2dma(list(range(25, 32))))
    ACC = 32
    g.wait(vm=hp)
    e(f"v_mov_b32 v{a1}, 1")
    g.vm(f"buffer_store_dword v{a1}, v{vFl}, {srd(SWS)}, 0 offen offset:128 sc1")
    for q in range(4):
        for h in range(2):
            e(f"v_lshlrev_b32 v{ACC+4*q+2*h}, 16, v{XR+2*q+h}"); e(f"v_and_b32 v{ACC+4*q+2*h+1}, s{sMASK}, v{XR+2*q+h}")
    e(f"v_cmp_ne_u32 vcc, 1, v{vPd}"); e("s_nop 4"); e("s_cbranch_vccnz L_hspin")
    g.label("L_hok")
    g.stamp("hpoll_ok")
    def hreg(n):
        return ("v", 96 + 4 * n) if n < 40 else ("a", 4 * (n - 40)) if n < 64 else ("v", 96 + 4 * (n - 64))
    hl_ = {}
    def hload(ks, i):
        n = 2 * ks + i; t, r = hreg(n)
        if ks < 28: so, kk = (sH0, sH1)[i], ks
        else: so, kk = (sO0, sO1)[i], ks - 28
        if kk and kk % 4 == 0: e(f"s_add_u32 s{so}, s{so}, 4096")
        hl_[n] = g.vm(f"buffer_load_dwordx4 {t}[{r}:{r+3}], v{vL16}, {srd(SWS)}, s{so} offen offset:{(kk&3)*1024} sc1")
    OP_AT = o["opoll_at"]
    for ks in range(28):
        hload(ks, 0); hload(ks, 1)
        if ks == OP_AT: op = g.vm(f"buffer_load_dword v{vPd}, v{vPo}, {srd(SWS)}, 0 offen offset:128 sc1")
    FR2 = 96
    w2l = {}
    def w2frag(ks):
        if ks < 16: return
        g.wait(vm=dma[("w2", ks)])
        for nb in range(2):
            r = FR2 + 8 * (ks % 4) + 4 * nb
            for sec in range(2):
                w2l[ks] = g.lg(f"ds_read_b64_tr_b16 a[{r+2*sec}:{r+2*sec+1}], v{vTW[nb]} offset:{W2U[ks%16] + 1024*sec}")
    for ks in range(36):
        if ks + 2 < 36: w2frag(ks + 2)
        if ks == OP_AT + 1:
            g.wait(vm=op)
            e(f"v_cmp_ne_u32 vcc, 1, v{vPd}"); e("s_nop 4"); e("s_cbranch_vccnz L_ospin")
            g.label("L_ook")
            g.stamp("opoll_ok")
            for k2 in range(28, 36):
                assert 2 * k2 < 64 or (2 * k2 - 64) // 2 < ks
                hload(k2, 0); hload(k2, 1)
        if ks == 20: emit_items(w2dma([32, 33, 34, 35]))
        g.wait(vm=hl_[2 * ks + 1], lg=w2l.get(ks))
        for i in range(2):
            t, r = hreg(2 * ks + i)
            for j in range(2):
                wr = (W2R + 8 * ks + 4 * j) if ks < 16 else (FR2 + 8 * (ks % 4) + 4 * j)
                d = f"v[{ACC+32*i+16*j}:{ACC+32*i+16*j+15}]"
                e(f"v_mfma_f32_32x32x16_bf16 {d}, a[{wr}:{wr+3}], {t}[{r}:{r+3}], {d if (ks or (i == 0 and j == 0)) else '0'}")
    g.stamp("p2_end")
    vRW = 1; vRR = [2, 3, 4]
    e(f"v_add_u32 v{vRW}, s{sRB}, v{vL16}")
    for s in range(1, 4):
        e(f"s_xor_b32 s{sT0}, s{sW}, {s}"); e(f"s_mul_i32 s{sT1}, s{sT0}, 40960"); e(f"s_lshr_b32 s{sT0}, s{sT0}, 1"); e(f"s_lshl_b32 s{sT0}, s{sT0}, 7")
        e(f"s_add_u32 s{sT0}, s{sT0}, s{sT1}"); e(f"v_add_u32 v{vRR[s-1]}, s{sT0}, v{vL16}")
    e(f"v_lshrrev_b32 v5, 5, v{lane}"); e(f"v_lshl_add_u32 v{vXo}, v5, 3, v{vXo}")
    for s in range(1, 4):
        for q in range(4):
            g.lg(f"ds_write_b128 v{vRW}, v[{ACC+16*s+4*q}:{ACC+16*s+4*q+3}] offset:{4096*s + 1024*q}")
    g.wait_all_lg()
    e("s_barrier")
    RD = 96; rrd = {}
    for s in range(1, 4):
        for q in range(4):
            rrd[(s, q)] = g.lg(f"ds_read_b128 v[{RD+16*(s-1)+4*q}:{RD+16*(s-1)+4*q+3}], v{vRR[s-1]} offset:{4096*s + 1024*q}")
    for s in range(1, 4):
        for q in range(4):
            g.wait(lg=rrd[(s, q)])
            for h in range(2):
                a = ACC + 4 * q + 2 * h; b = RD + 16 * (s - 1) + 4 * q + 2 * h
                e(f"v_pk_add_f32 v[{a}:{a+1}], v[{a}:{a+1}], v[{b}:{b+1}]")
    PK = 48
    for j in range(8): e(f"v_cvt_pk_bf16_f32 v{PK+j}, v{ACC+2*j}, v{ACC+2*j+1}")
    e("s_nop 0")
    for p in range(2):
        e(f"v_permlane32_swap_b32 v{PK+4*p}, v{PK+4*p+2}"); e(f"v_permlane32_swap_b32 v{PK+4*p+1}, v{PK+4*p+3}")
    for p in range(2):
        g.vm(f"buffer_store_dwordx4 v[{PK+4*p}:{PK+4*p+3}], v{vXo}, {srd(SOUT)}, s{sXR} offen offset:{32*p}")
    if diag:
        g.stamp("end")
        e("s_waitcnt lgkmcnt(0) vmcnt(0)")
        e(f"s_lshl_b32 s{sT0}, s2, 2"); e(f"s_add_u32 s{sT0}, s{sT0}, s{sW}"); e(f"s_lshl_b32 s{sT0}, s{sT0}, 6"); e(f"s_add_u32 s{sT0}, s{sT0}, {0xB00000}")
        e(f"s_mov_b32 s{SWS+2}, 0x1000000")
        for i in range(g.nstamp):
            e(f"v_mov_b32 v1, s{76+2*i}"); e(f"v_mov_b32 v2, {4*i}")
            e(f"buffer_store_dword v1, v2, {srd(SWS)}, s{sT0} offen")
        e("s_waitcnt vmcnt(0)")
    g.label("L_end")
    e("s_endpgm")
    g.label("L_dbgspin")
    e(f"s_add_u32 s{sSPIN}, s{sSPIN}, 1"); e(f"s_cmp_gt_u32 s{sSPIN}, {SPIN_MAX}"); e("s_cbranch_scc1 L_dbgok")
    e("s_sleep 2")
    e(f"s_lshl_b32 s{sT0}, s{sMT}, 2")
    e(f"buffer_load_dword v{vCK}, off, {srd(SDBG)}, s{sT0} sc1")
    e("s_waitcnt vmcnt(0)")
    e(f"v_readfirstlane_b32 s{sT0}, v{vCK}")
    e(f"s_cmp_lg_u32 s{sT0}, 0")
    e("s_cbranch_scc0 L_dbgspin")
    e("s_branch L_dbgok")
    for nm, off, back in (("L_hspin", 0, "L_hok"), ("L_ospin", 128, "L_ook")):
        g.label(nm)
        e(f"s_add_u32 s{sSPIN}, s{sSPIN}, 1"); e(f"s_cmp_gt_u32 s{sSPIN}, {SPIN_MAX}"); e(f"s_cbranch_scc1 {back}")
        e(f"buffer_load_dword v{vPd}, v{vPo}, {srd(SWS)}, 0 offen offset:{off} sc1")
        e("s_waitcnt vmcnt(0)")
        e(f"v_cmp_ne_u32 vcc, 1, v{vPd}"); e("s_nop 4")
        e(f"s_cbranch_vccnz {nm}")
        e(f"s_branch {back}")
    hdr = open("cdna_kernels/" + NAME + ".s.ref").read().split("; Override")[0]
    txt = hdr + "; @launch grid=(256,1,1) block=(256,1,1) lds=163840\n"
    txt += f""".amdgcn_target "amdgcn-amd-amdhsa--gfx950"
.text
.globl {NAME}_kernel
.p2align 8
.type {NAME}_kernel,@function
{NAME}_kernel:
""" + "\n".join(g.L) + f"""
.section .rodata,"a"
.p2align 6
.amdhsa_kernel {NAME}_kernel
  .amdhsa_next_free_vgpr 512
  .amdhsa_next_free_sgpr 102
  .amdhsa_accum_offset 256
  .amdhsa_group_segment_fixed_size 0
  .amdhsa_kernarg_size 80
  .amdhsa_user_sgpr_count 2
  .amdhsa_user_sgpr_kernarg_segment_ptr 1
  .amdhsa_system_sgpr_workgroup_id_x 1
.end_amdhsa_kernel
"""
    return txt, g.stamp_names

if __name__ == "__main__":
    diag = "--diag" in sys.argv
    out = [a for a in sys.argv[1:] if not a.startswith("--")]
    txt, names = gen(diag)
    open(out[0] if out else "cdna_kernels/" + NAME + ".s", "w").write(txt)
    print("stamps:", names, "lines:", txt.count("\n"))
```

```python
import sys

NAME = "parallel_sum__sliding_local_dilated__glu_gated_reglu__prompt"
FL = 0xA00000
WS_BYTES = FL + 0x10000
OOB = 0x7ff00000
NSTAMP = 9
ST0 = 82

class G:
    def __init__(self, diag=False, stamps=None):
        self.L = []
        self.vm_n = 0; self.vm_done = 0
        self.lg_n = 0; self.lg_done = 0
        self.smem = False
        self.diag = diag
        self.want = stamps
        self.stamp_names = []
    def e(self, s): self.L.append("    " + s)
    def label(self, s): self.L.append(s + ":")
    def vm(self, s):
        if " lds" in s and self.L[-1].split()[:2] in (["s_add_u32", "m0,"], ["s_mov_b32", "m0,"]): self.e("s_nop 0")
        self.e(s); self.vm_n += 1; return self.vm_n - 1
    def lg(self, s):
        if self.lg_n - self.lg_done >= 15: self.wait(lg=self.lg_done)
        self.e(s); self.lg_n += 1
        return self.lg_n - 1
    def wait(self, vm=None, lg=None):
        parts = []
        if vm is not None and vm >= self.vm_done:
            n = self.vm_n - 1 - vm
            parts.append(f"vmcnt({min(n, 63)})"); self.vm_done = vm + 1
        if lg is not None and lg >= self.lg_done:
            n = self.lg_n - 1 - lg
            if self.smem:
                n = 0; self.smem = False; self.lg_done = self.lg_n
            else:
                self.lg_done = lg + 1
            assert n <= 15
            parts.append(f"lgkmcnt({n})")
        if parts:
            self.e("s_waitcnt " + " ".join(parts)); return 1
        return 0
    def wait_all_lg(self):
        self.e("s_waitcnt lgkmcnt(0)"); self.lg_done = self.lg_n; self.smem = False
    def stamp(self, name):
        if not self.diag or (self.want and name not in self.want): return
        n = len(self.stamp_names)
        assert n < NSTAMP, name
        self.e(f"s_memtime s[{ST0+2*n}:{ST0+2*n+1}]"); self.smem = True
        self.stamp_names.append(name)

def RBc(x): return 40960 * x + 128 * (x >> 1)

DEFAULT_STAMPS = ["start", "x_done", "mfma_start", "pass1_end", "pass2_end", "attn_end", "p2_start", "p2_end", "end"]

def gen(diag=False, opt=None):
    o = dict(rotm=8, D=7, WB=3, dmacost=2, L=6, op_issue=16, op_check=21, hflag_delay=36, rot2=2, codepf=1, stamps=DEFAULT_STAMPS,
             hp_issue=2, hp_check=2, att_ratio=12, epi_over=4, w0_first=2, rowrot=1, s_ratio=15, burst=5, w0_pos=7, dma_gap=2, dma_gap2=2, st_early=1, touch=1)
    if opt: o.update(opt)
    g = G(diag, o["stamps"]); e = g.e
    sW, sMT, sSL, sROT, sM2, sNT, sRB, sMASK = 3, 4, 5, 6, 7, 60, 61, 62
    SX, SW1, SQKV, SWD, SWO, SWS, SOUT, SDBG = 8, 12, 16, 20, 24, 28, 32, 36
    sP1 = [40 + i for i in range(8)]
    sP2 = [48 + i for i in range(4)]
    sXO = [64 + i for i in range(8)]
    sT0, sT1, sT2, sT3 = 72, 73, 74, 0
    sHST = 52; sW2D = 53; sW2O = 54; sH0 = 55; sH1 = 56; sO0 = 57; sO1 = 58; sTb = 59; sT4 = 63; sT5 = 1
    sGK = [75 + i for i in range(7)]
    sDL = 101 if not diag else 2
    sSPIN = 100; SPIN_MAX = 100000
    def srd(r): return f"s[{r}:{r+3}]"
    XN = 128; PUB = 80; ACCV = 32
    def xn(k): return XN + 4 * k
    vL16 = 0
    vD2 = [1, 2, 3]
    vT2 = [4, 5, 6, 7]
    vT1 = [8, 9]
    vR, vC = 10, 11
    vTmp = [12, 13, 14, 15]
    vHA = 12
    vHR = [16, 17]
    vDW = [18, 19, 20, 21]
    vCK = 22
    lane = 23
    vTH = [24, 25, 26, 27]
    vTW = [28, 29]
    vFl = 30; vPo = 31
    vD1 = [120 + i for i in range(7)]
    vSg = 127
    vTouch = 119
    PU = [0, 3, 7, 10, 14, 17, 21, 25, 29]
    pureg = {k: PUB + 4 * i for i, k in enumerate(PU)}
    def acc1(b): return ("v", ACCV + 16 * b) if b < 3 else ("a", 16 * (b - 3))
    def rr(t, r, n): return f"{t}[{r}:{r+n-1}]"
    FR = 64
    HX = 96
    D = o["D"]; WB = o["WB"]
    ids = {}

    def emit(it):
        if isinstance(it, str): e(it)
        elif it[0] == "vm": ids[it[1]] = g.vm(it[2])
        elif it[0] == "lg": ids[it[1]] = g.lg(it[2])
        elif it[0] == "fn": it[1]()
    def emit_all(items):
        for it in items: emit(it)
    def is_vm(it): return (not isinstance(it, str)) and it[0] == "vm"
    def weave(work, mem, ratio):
        n = 0
        for j, it in enumerate(work):
            n0 = len(g.L); emit(it); n += len(g.L) - n0
            nx = work[j + 1] if j + 1 < len(work) else None
            if n >= ratio and not (isinstance(nx, str) and nx.startswith("s_cselect")):
                n = 0
                while mem:
                    m = mem.pop(0); emit(m)
                    if is_vm(m): break
    def push_front(q, items, after_w1=False):
        j = 0
        if after_w1:
            for n_, it in enumerate(q):
                if is_vm(it) and it[1][0] == "w1": j = n_ + 1
        while j < len(q) and not (isinstance(q[j], str) and q[j].startswith("s_add_u32 m0")): j += 1
        q[j:j] = items
    W = lambda **kw: ("fn", lambda: g.wait(**{k: (ids[v] if not isinstance(v, int) else v) for k, v in kw.items()}))

    e("s_cmp_ge_u32 s2, 256")
    e("s_cbranch_scc1 L_end")
    g.stamp("start")
    if diag: e("s_memrealtime s[70:71]"); e("s_waitcnt lgkmcnt(0)"); e("s_mov_b32 s101, s70")
    for r, off in ((SX, 0), (SQKV, 8), (SWO, 16), (SWD, 48), (SOUT, 56), (SDBG, 64), (SWS, 72)):
        e(f"s_load_dwordx2 s[{r}:{r+1}], s[0:1], {off}")
    e("s_load_dwordx4 s[40:43], s[0:1], 32")
    e("v_lshrrev_b32 v1, 6, v0")
    e(f"v_and_b32 v{lane}, 63, v0")
    e(f"v_readfirstlane_b32 s{sW}, v1")
    e(f"s_and_b32 s{sT0}, s2, 7"); e(f"s_lshr_b32 s{sT1}, s2, 3")
    vHRAW = 32
    vXD = [48, 49, 50, 51]; vXR = [52, 53, 54, 55]; vHW = [56, 57, 58, 59]
    vS = [60, 61]; vQ = [62, 63]; vHo = 64; vONE = 65; hS = [77, 78]; hQ = [79, 64]
    t0, t1, t2, t3 = 66, 67, 68, 69
    hr, hc = 70, 71
    vZ = 72
    if o["codepf"]:
        e("s_getpc_b64 s[44:45]"); g.label("L_pc")
        e(f"s_mov_b32 s46, L_codeend-L_pc"); e("s_mov_b32 s47, 0x20000")
        e(f"s_lshl_b32 s{sT2}, s{sT1}, 2"); e(f"s_add_u32 s{sT2}, s{sT2}, s{sW}"); e(f"s_lshl_b32 s{sT2}, s{sT2}, 8")
        e(f"v_lshlrev_b32 v{t0}, 7, v{lane}"); e(f"v_cmp_gt_u32 vcc, 2, v{lane}"); e(f"v_add_u32 v{t0}, s{sT2}, v{t0}"); e(f"v_mov_b32 v{t1}, {OOB}")
        e(f"v_cndmask_b32 v{t0}, v{t1}, v{t0}, vcc")
        g.vm(f"buffer_load_dword v{vC}, v{t0}, s[44:47], 0 offen")
    e(f"s_lshr_b32 s{sMT}, s{sT0}, 1"); e(f"s_lshl_b32 s{sMT}, s{sMT}, 2"); e(f"s_and_b32 s{sT2}, s{sT1}, 3"); e(f"s_add_u32 s{sMT}, s{sMT}, s{sT2}")
    e(f"s_and_b32 s{sSL}, s{sT0}, 1"); e(f"s_lshl_b32 s{sSL}, s{sSL}, 3"); e(f"s_lshr_b32 s{sNT}, s{sT1}, 2"); e(f"s_add_u32 s{sSL}, s{sSL}, s{sNT}")
    e(f"s_lshl_b32 s{sM2}, s{sT0}, 2"); e(f"s_add_u32 s{sM2}, s{sM2}, s{sT2}")
    if o["rotm"] == 4:
        e(f"s_and_b32 s{sROT}, s{sMT}, 1"); e(f"s_lshl_b32 s{sROT}, s{sROT}, 2")
    elif o["rotm"] == 2:
        e(f"s_lshl_b32 s{sROT}, s{sT2}, 1")
    elif o["rotm"] == 8:
        e(f"s_lshr_b32 s{sROT}, s{sMT}, 2"); e(f"s_lshl_b32 s{sROT}, s{sROT}, 1")
    elif o["rotm"] == 1:
        e(f"s_lshl_b32 s{sROT}, s{sT2}, 1"); e(f"s_bfe_u32 s{sT2}, s{sMT}, 0x10002"); e(f"s_add_u32 s{sROT}, s{sROT}, s{sT2}")
    else:
        e(f"s_mov_b32 s{sROT}, 0")
    e(f"s_add_u32 s{sROT}, s{sROT}, s{sSL}"); e(f"s_and_b32 s{sROT}, s{sROT}, 7")
    sJ8 = sH0
    if o["rowrot"]: e(f"s_and_b32 s{sJ8}, s{sMT}, 3"); e(f"s_lshl_b32 s{sJ8}, s{sJ8}, 3")
    else: e(f"s_mov_b32 s{sJ8}, 0")
    e(f"s_mul_i32 s{sRB}, s{sW}, 40960"); e(f"s_lshr_b32 s{sT0}, s{sW}, 1"); e(f"s_lshl_b32 s{sT0}, s{sT0}, 7"); e(f"s_add_u32 s{sRB}, s{sRB}, s{sT0}")
    e(f"s_lshl_b32 s{sXO[0]}, s{sROT}, 7")
    e(f"s_lshl_b32 s{sTb}, s{sMT}, 17"); e(f"s_lshl_b32 s{sT0}, s{sW}, 15"); e(f"s_add_u32 s{sTb}, s{sTb}, s{sT0}")
    e(f"s_mov_b32 s{SX+2}, 2097152"); e(f"s_mov_b32 s{SX+3}, 0x20000")
    e(f"v_lshlrev_b32 v{vL16}, 4, v{lane}")
    e(f"v_lshrrev_b32 v{t0}, 4, v{lane}")
    e(f"v_lshrrev_b32 v{t2}, 3, v{lane}"); e(f"v_lshlrev_b32 v{t2}, 10, v{t2}"); e(f"v_and_b32 v{t3}, 7, v{lane}"); e(f"v_xor_b32 v{t3}, v{t3}, v{t0}")
    e(f"v_add_u32 v{t2}, s{sTb}, v{t2}")
    e(f"v_lshl_add_u32 v{vXD[0]}, v{t3}, 4, v{t2}"); e(f"v_xor_b32 v{vXD[1]}, 64, v{vXD[0]}")
    e(f"v_add_u32 v{vXD[2]}, {2*7168}, v{vXD[0]}"); e(f"v_add_u32 v{vXD[3]}, {3*7168}, v{vXD[1]}"); e(f"v_add_u32 v{vXD[1]}, 7168, v{vXD[1]}")
    e(f"s_and_b32 s{sT1}, s{sW}, 1"); e(f"s_mul_i32 s{sT1}, s{sT1}, {32*3584}"); e(f"s_mul_i32 s{sT2}, s{sSL}, 224"); e(f"s_add_u32 s{sT1}, s{sT1}, s{sT2}")
    e(f"s_add_u32 s{sT1}, s{sT1}, 4096")
    e(f"v_add_u32 v{t2}, s{sT1}, v{vL16}"); e(f"s_movk_i32 s{sT2}, 3584")
    VD = []
    for i in range(7):
        VD += [f"v_add_u32 v{t0}, {64*i}, v{lane}", f"v_mul_u32_u24 v{t0}, 4682, v{t0}", f"v_lshrrev_b32 v{t0}, 16, v{t0}"]
        if i == 4: VD += [f"v_add_u32 v{t2}, 4096, v{t2}"]
        VD += [f"v_mul_u32_u24 v{t1}, 224, v{t0}", f"v_xor_b32 v{t0}, s{sJ8}, v{t0}", f"v_sub_u32 v{t1}, v{t2}, v{t1}",
               f"v_mad_u32_u24 v{vD1[i]}, v{t0}, s{sT2}, v{t1}"]
    for cc in range(448): assert (cc * 4682) >> 16 == cc // 14
    emit_all(VD[:14])
    e(f"s_add_u32 m0, s{sRB}, 7168")
    e("s_waitcnt lgkmcnt(0)"); g.smem = False
    g.stamp("args")
    def xdma(s):
        out = [] if s == 0 else [f"s_add_u32 m0, s{sRB}, {7168 + 4096*s}"]
        return out + [("vm", ("xd", s), f"buffer_load_dwordx4 v{vXD[i]}, {srd(SX)}, s{sXO[s]} offen offset:{1024*i} lds") for i in range(4)]
    emit_all(xdma(0))
    e(f"s_cmp_ge_u32 s{sW}, 2"); e(f"s_cselect_b32 s{SW1}, s42, s40"); e(f"s_cselect_b32 s{SW1+1}, s43, s41")
    e(f"s_sub_u32 s{SW1}, s{SW1}, 4096"); e(f"s_subb_u32 s{SW1+1}, s{SW1+1}, 0")
    e(f"s_mov_b32 s{SW1+2}, {1835008 + 4096}"); e(f"s_mov_b32 s{SW1+3}, 0x20000"); e(f"s_mul_i32 s{sP1[0]}, s{sXO[0]}, 1792")

    SLOT = {0: 0, 1: 1, 2: 2, 3: 3, 4: 4, 5: 0, 6: 1, 7: 2, 8: 3, 9: 0, 10: 1, 11: 4}
    def dma1(st):
        out = [f"s_add_u32 m0, s{sRB}, {7168*SLOT[st]}"]
        for i in range(7):
            if i == 4: out.append(f"s_add_u32 m0, s{sRB}, {7168*SLOT[st] + 4096}")
            out.append(("vm", ("w1", st), f"buffer_load_dwordx4 v{vD1[i]}, {srd(SW1)}, s{sP1[st]} offen offset:{(i&3)*1024} lds"))
        return out
    def dma2(st):
        q = st - 8
        out = [f"s_add_u32 m0, s{sRB}, {7168*SLOT[st]}"]
        for i in range(6):
            if i == 3: out += [f"s_add_u32 m0, s{sRB}, {7168*SLOT[st] + 3072}", f"s_add_u32 s{sP2[q]}, s{sP2[q]}, s{sDL}"]
            out.append(("vm", ("w1", st), f"buffer_load_dwordx4 v{vD2[i%3]}, {srd(SQKV)}, s{sP2[q]} offen offset:{(i%3)*1024} lds"))
        return out

    w0 = dma1(0)
    nfirst = o["w0_first"]
    while nfirst and w0:
        it = w0.pop(0); emit(it); nfirst -= is_vm(it)
    A = [f"s_lshl_b32 s{sT4}, s{sMT}, 7", f"s_sub_i32 s{sT4}, s{sT4}, 16", f"s_max_i32 s{sT4}, s{sT4}, 0",
         f"s_lshl_b32 s{sT0}, s{sW}, 2", f"s_add_u32 s{sT4}, s{sT4}, s{sT0}", f"s_lshl_b32 s{sT4}, s{sT4}, 10",
         f"v_lshrrev_b32 v{t0}, 4, v{lane}", f"v_lshlrev_b32 v{vHo}, 10, v{t0}", f"v_and_b32 v{t1}, 15, v{lane}", f"v_lshl_add_u32 v{vHo}, v{t1}, 4, v{vHo}"]
    for s in range(1, 8): A += [f"s_add_u32 s{sXO[s]}, s{sXO[s-1]}, 128", f"s_and_b32 s{sXO[s]}, s{sXO[s]}, 0x380"]
    A += [f"s_mul_i32 s{sP1[s]}, s{sXO[s]}, 1792" for s in range(1, 8)]
    A += [f"s_mov_b32 s{sMASK}, 0xffff0000", f"s_mov_b32 s{sSPIN}, 0", f"v_mov_b32 v{vONE}, 0x3f803f80"]
    A += [f"s_sub_u32 s{SQKV}, s{SQKV}, 4096", f"s_subb_u32 s{SQKV+1}, s{SQKV+1}, 0"]
    for r, n in ((SQKV, 1572864 + 4096), (SWO, 524288), (SWD, 1835008), (SOUT, 2097152), (SDBG, 256), (SWS, WS_BYTES)):
        A += [f"s_mov_b32 s{r+2}, {n}", f"s_mov_b32 s{r+3}, 0x20000"]
    A += [f"v_and_b32 v{t0}, 31, v{lane}", f"v_lshlrev_b32 v{t1}, 7, v{t0}", f"v_add_u32 v{t1}, s{sRB}, v{t1}",
          f"v_bfe_u32 v{t2}, v{lane}, 1, 3", f"v_lshrrev_b32 v{t3}, 5, v{lane}", f"v_xor_b32 v{t2}, v{t2}, v{t3}", f"v_lshl_add_u32 v{vXR[0]}, v{t2}, 4, v{t1}",
          f"s_lshl_b32 s{sT0}, s{sJ8}, 1", f"v_xor_b32 v{vXR[0]}, s{sT0}, v{vXR[0]}"]
    A += [f"v_xor_b32 v{vXR[jj]}, {32*jj}, v{vXR[0]}" for jj in (1, 2, 3)]
    halo_ld = [("vm", "halo", f"buffer_load_dwordx4 v[{vHRAW+4*i}:{vHRAW+4*i+3}], v{vHo}, {srd(SX)}, s{sT4} offen offset:{256*i}") for i in range(4)]
    B = []
    B += [f"v_lshrrev_b32 v{t0}, 5, v{lane}", f"v_bfe_u32 v{t1}, v{lane}, 2, 2", f"v_lshl_add_u32 v{t0}, v{t0}, 3, v{t1}",
          f"v_mul_u32_u24 v{t0}, 224, v{t0}", f"v_and_b32 v{t1}, 3, v{lane}", f"v_lshl_add_u32 v{t0}, v{t1}, 3, v{t0}",
          f"v_bfe_u32 v{t1}, v{lane}, 4, 1", f"v_mul_u32_u24 v{t1}, {RBc(2)}, v{t1}", f"v_add_u32 v{vT1[0]}, v{t0}, v{t1}", f"v_add_u32 v{vT1[1]}, 40960, v{vT1[0]}"]
    B += [f"v_lshrrev_b32 v{t0}, 4, v{lane}", f"s_lshl_b32 s{sT0}, s{sW}, 2", f"v_add_u32 v{t1}, s{sT0}, v{t0}", f"v_and_b32 v{t1}, 7, v{t1}",
          f"v_lshlrev_b32 v{t0}, 10, v{t0}", f"v_add_u32 v{t0}, s{sRB}, v{t0}",
          f"s_lshl_b32 s{sT0}, s{sROT}, 3", f"v_and_b32 v{t2}, 15, v{lane}", f"v_xor_b32 v{t2}, v{t2}, v{t1}", f"v_subrev_u32 v{t2}, s{sT0}, v{t2}"]
    for i in range(4):
        B += [f"v_add_u32 v{t3}, {16*i}, v{t2}", f"v_and_b32 v{t3}, 63, v{t3}", f"v_lshl_add_u32 v{vHW[i]}, v{t3}, 4, v{t0}"]
    B += [f"v_bfe_u32 v{t0}, v{lane}, 2, 2", f"v_mul_u32_u24 v{t1}, 40960, v{t0}", f"v_lshrrev_b32 v{t0}, 1, v{t0}", f"v_lshl_add_u32 v{t1}, v{t0}, 7, v{t1}",
          f"v_and_b32 v{t0}, 3, v{lane}", f"v_lshl_add_u32 v{t1}, v{t0}, 10, v{t1}",
          f"v_lshrrev_b32 v{t0}, 4, v{lane}", f"v_and_b32 v{t2}, 7, v{lane}", f"v_xor_b32 v{t0}, v{t0}, v{t2}",
          f"v_lshl_add_u32 v{vHR[0]}, v{t0}, 4, v{t1}", f"s_lshl_b32 s{sT0}, s{sJ8}, 1", f"v_xor_b32 v{vHR[0]}, s{sT0}, v{vHR[0]}", f"v_xor_b32 v{vHR[1]}, 64, v{vHR[0]}"]
    B += [f"v_lshrrev_b32 v{t0}, 3, v{lane}", f"v_lshlrev_b32 v{t0}, 10, v{t0}", f"v_bfe_u32 v{t1}, v{lane}, 4, 1", f"v_lshlrev_b32 v{t1}, 2, v{t1}",
          f"v_and_b32 v{t2}, 7, v{lane}", f"v_xor_b32 v{t1}, v{t1}, v{t2}", f"v_lshl_add_u32 v{vDW[0]}, v{t1}, 4, v{t0}"]
    B += [f"v_add_u32 v{vDW[i]}, {7168*i}, v{vDW[0]}" for i in (1, 2, 3)]
    B += [f"v_mov_b32 v{vZ+i}, 0" for i in range(4)]
    B += [f"s_lshl_b32 s{sT0}, s{sMT}, 12", f"s_lshl_b32 s{sT1}, s{sW}, 10", f"s_add_u32 s{sT0}, s{sT0}, s{sT1}", f"s_add_u32 s{sT0}, s{sT0}, {FL}",
          f"s_cmp_eq_u32 s{sSL}, 0", f"s_cselect_b32 s{sT0}, s{sT0}, {OOB}", f"v_add_u32 v{vZ+4}, s{sT0}, v{vL16}"]
    B += [f"s_cmp_ge_u32 s{sW}, 2"] + [f"s_cselect_b32 s{sP2[q]}, s{sXO[2*q+1]}, s{sXO[2*q]}" for q in range(4)]
    B += [f"s_mul_i32 s{sP2[q]}, s{sP2[q]}, 1536" for q in range(4)]
    B += [f"s_and_b32 s{sT0}, s{sJ8}, 16", f"s_mul_i32 s{sT0}, s{sT0}, 3072"] + [f"s_add_u32 s{sP2[q]}, s{sP2[q]}, s{sT0}" for q in range(4)]
    B += [f"s_lshl_b32 s{sT0}, s{sT0}, 1", f"s_sub_i32 s{sDL}, {16*3072}, s{sT0}", f"s_and_b32 s{sT0}, s{sJ8}, 8"]
    B += [f"s_and_b32 s{sT1}, s{sW}, 1", f"s_mul_i32 s{sT1}, s{sT1}, {32*3072}", f"s_lshl_b32 s{sT2}, s{sSL}, 6", f"s_add_u32 s{sT1}, s{sT1}, s{sT2}", f"s_add_u32 s{sT1}, s{sT1}, 4096"]
    for i in range(3):
        B += [f"v_add_u32 v{t0}, {64*i}, v{lane}", f"v_mul_u32_u24 v{t1}, 5462, v{t0}", f"v_lshrrev_b32 v{t1}, 16, v{t1}",
              f"v_mul_u32_u24 v{t2}, 12, v{t1}", f"v_sub_u32 v{t0}, v{t0}, v{t2}",
              f"v_xor_b32 v{t1}, s{sT0}, v{t1}", f"v_mul_u32_u24 v{t2}, 3072, v{t1}", f"v_lshrrev_b32 v{t1}, 2, v{t0}", f"v_lshl_add_u32 v{t2}, v{t1}, 10, v{t2}",
              f"v_and_b32 v{t0}, 3, v{t0}", f"v_lshl_add_u32 v{t2}, v{t0}, 4, v{t2}", f"v_add_u32 v{vD2[i]}, s{sT1}, v{t2}"]
        if i: B.append(f"v_subrev_u32 v{vD2[i]}, {1024*i}, v{vD2[i]}")
    for cc in range(192): assert (cc * 5462) >> 16 == cc // 12
    B += [f"v_bfe_u32 v{t1}, v{lane}, 2, 2", f"v_and_b32 v{t3}, 3, v{lane}", f"v_lshrrev_b32 v{t0}, 5, v{lane}", f"v_lshl_add_u32 v{t0}, v{t0}, 3, v{t1}",
          f"v_mul_u32_u24 v{t0}, 192, v{t0}", f"v_lshl_add_u32 v{t0}, v{t3}, 3, v{t0}",
          f"v_bfe_u32 v{t2}, v{lane}, 4, 1", f"v_lshl_add_u32 v{vT2[0]}, v{t2}, 5, v{t0}"]
    B += [f"v_add_u32 v{vT2[r]}, {RBc(r)}, v{vT2[0]}" for r in (1, 2, 3)]
    B += [f"v_lshrrev_b32 v{t0}, 4, v{lane}", f"v_lshl_add_u32 v{t0}, v{t0}, 3, v{t1}", f"v_mul_u32_u24 v{t0}, 192, v{t0}", f"v_lshl_add_u32 v{t0}, v{t3}, 3, v{t0}",
          f"s_lshl_b32 s{sT1}, s{sW}, 5", f"s_add_u32 s{sT1}, s{sT1}, 64", f"v_add_u32 v{vTH[0]}, s{sT1}, v{t0}"]
    B += [f"v_add_u32 v{vTH[r]}, {RBc(r)}, v{vTH[0]}" for r in (1, 2, 3)]
    B += [f"v_lshrrev_b32 v{t0}, 5, v{lane}", f"v_lshl_add_u32 v{t0}, v{t0}, 2, v{t1}", f"v_lshlrev_b32 v{t0}, 7, v{t0}",
          f"v_add_u32 v{t0}, s{sRB}, v{t0}", f"v_lshl_add_u32 v{t0}, v{t3}, 3, v{t0}", f"v_lshl_add_u32 v{t0}, v{t2}, 5, v{t0}",
          f"v_bfe_u32 v{t1}, v{lane}, 3, 1", f"s_and_b32 s{sT1}, s{sW}, 1", f"v_xor_b32 v{t1}, s{sT1}, v{t1}", f"v_lshl_add_u32 v{vTW[0]}, v{t1}, 6, v{t0}",
          f"v_xor_b32 v{vTW[1]}, 64, v{vTW[0]}"]
    B += [f"s_lshl_b32 s{sT0}, s{sMT}, 1", f"s_lshr_b32 s{sT1}, s{sW}, 1", f"s_add_u32 s{sT0}, s{sT0}, s{sT1}", f"s_lshl_b32 s{sT0}, s{sT0}, 11",
          f"s_lshl_b32 s{sT1}, s{sSL}, 3", f"s_add_u32 s{sT0}, s{sT0}, s{sT1}", f"s_and_b32 s{sT1}, s{sW}, 1", f"s_lshl_b32 s{sT1}, s{sT1}, 2",
          f"s_add_u32 s{sT0}, s{sT0}, s{sT1}", f"s_add_u32 s{sT0}, s{sT0}, {FL}",
          f"v_lshlrev_b32 v{vFl}, 8, v{lane}", f"v_add_u32 v{vFl}, s{sT0}, v{vFl}", f"v_cmp_gt_u32 vcc, 8, v{lane}", f"v_mov_b32 v{t0}, {OOB}",
          f"s_lshl_b32 s{sT0}, s{sM2}, 3", f"v_cndmask_b32 v{vFl}, v{t0}, v{vFl}, vcc",
          f"s_add_u32 s{sT0}, s{sT0}, s{sNT}", f"s_lshl_b32 s{sT0}, s{sT0}, 8", f"s_lshl_b32 s{sT1}, s{sW}, 5",
          f"s_add_u32 s{sT0}, s{sT0}, s{sT1}", f"s_add_u32 s{sT0}, s{sT0}, {FL}",
          f"v_and_b32 v{vPo}, 7, v{lane}", f"v_lshlrev_b32 v{vPo}, 2, v{vPo}", f"v_add_u32 v{vPo}, s{sT0}, v{vPo}",
          f"s_lshl_b32 s{sT0}, s{sMT}, 2", f"s_or_b32 s{sT1}, s{sSL}, s{sW}", f"s_cmp_eq_u32 s{sT1}, 0", f"s_cselect_b32 s{sT0}, s{sT0}, 0x1000",
          f"v_lshlrev_b32 v{vSg}, 12, v{lane}", f"v_add_u32 v{vSg}, s{sT0}, v{vSg}", f"v_mov_b32 v{vCK}, 1", f"s_lshl_b32 s{sT5}, s{sMT}, 2"]
    B += [f"s_lshl_b32 s{sT0}, s{sM2}, 3", f"s_add_u32 s{sT0}, s{sT0}, s{sNT}", f"s_lshl_b32 s{sT0}, s{sT0}, 2", f"s_add_u32 s{sT0}, s{sT0}, s{sW}", f"s_lshl_b32 s{sT0}, s{sT0}, 9",
          f"v_lshlrev_b32 v{vTouch}, 7, v{lane}", f"v_add_u32 v{vTouch}, s{sT0}, v{vTouch}", f"v_cmp_gt_u32 vcc, 4, v{lane}", f"v_mov_b32 v{t0}, {OOB}", "s_nop 0",
          f"v_cndmask_b32 v{vTouch}, v{t0}, v{vTouch}, vcc"]
    B += [f"s_lshl_b32 s{sT0}, s{sM2}, 1", f"s_lshr_b32 s{sT1}, s{sW}, 1", f"s_add_u32 s{sT2}, s{sT0}, s{sT1}", f"s_xor_b32 s{sT3}, s{sT2}, 1",
          f"s_mul_i32 s{sT2}, s{sT2}, {144*1024}", f"s_mul_i32 s{sT3}, s{sT3}, {144*1024}",
          f"s_mul_i32 s{sT0}, s{sW}, {28*1024}", f"s_add_u32 s{sT0}, s{sT0}, {32*1024}", f"s_add_u32 s{sH0}, s{sT2}, s{sT0}", f"s_add_u32 s{sH1}, s{sT3}, s{sT0}",
          f"s_lshl_b32 s{sT0}, s{sW}, 13", f"s_add_u32 s{sO0}, s{sT2}, s{sT0}", f"s_add_u32 s{sO1}, s{sT3}, s{sT0}"]
    B += [f"s_lshl_b32 s{sTb}, s{sMT}, 2", f"s_add_u32 s{sTb}, s{sTb}, s{sW}", f"s_mul_i32 s{sTb}, s{sTb}, {144*1024}",
          f"s_mul_i32 s{sT0}, s{sSL}, 7168", f"s_add_u32 s{sHST}, s{sTb}, s{sT0}", f"s_add_u32 s{sHST}, s{sHST}, {32*1024}",
          f"s_lshl_b32 s{sT0}, s{sNT}, 7", f"s_mul_i32 s{sW2D}, s{sW}, {448*1024}", f"s_add_u32 s{sW2D}, s{sW2D}, s{sT0}",
          f"s_lshl_b32 s{sW2O}, s{sW}, 17", f"s_add_u32 s{sW2O}, s{sW2O}, s{sT0}"]
    if o["rot2"]:
        B += [f"s_and_b32 s{sT0}, s{sM2}, 3", f"s_lshl_b32 s{sT0}, s{sT0}, 1", f"s_lshr_b32 s{sT1}, s{sM2}, 2", f"s_add_u32 s{sT0}, s{sT0}, s{sT1}"]
        if o["rot2"] == 1: B += [f"s_add_u32 s{sT0}, s{sT0}, s{sNT}"]
        if o["rot2"] == 3: B += [f"s_and_b32 s{sT1}, s{sNT}, 1", f"s_mul_i32 s{sT1}, s{sT1}, 3", f"s_add_u32 s{sT0}, s{sT0}, s{sT1}"]
        if o["rot2"] == 4: B += [f"s_and_b32 s{sT1}, s{sNT}, 1", f"s_add_u32 s{sT0}, s{sT0}, s{sT1}"]
        B += [f"s_mul_i32 s{sT1}, s{sT0}, 37", f"s_lshr_b32 s{sT1}, s{sT1}, 8", f"s_mul_i32 s{sT1}, s{sT1}, 7", f"s_sub_u32 s{sT0}, s{sT0}, s{sT1}", f"s_lshl_b32 s{sGK[0]}, s{sT0}, 12"]
        for x in range(21): assert (x * 37) >> 8 == x // 7
    else:
        B += [f"s_mov_b32 s{sGK[0]}, 0"]
    for j in range(1, 7):
        B += [f"s_add_u32 s{sGK[j]}, s{sGK[j-1]}, 4096", f"s_cmp_eq_u32 s{sGK[j]}, {7*4096}", f"s_cselect_b32 s{sGK[j]}, 0, s{sGK[j]}"]

    def ln_scalars(vs, vq, r, c, ta, tb):
        return [f"v_mul_f32 v{vs}, 0x3b000000, v{vs}", f"v_mul_f32 v{vq}, 0x3b000000, v{vq}", f"v_fma_f32 v{vq}, -v{vs}, v{vs}, v{vq}",
                f"v_max_f32 v{vq}, 0, v{vq}", f"v_cvt_pk_bf16_f32 v{ta}, v{vs}, v{vq}", f"v_and_b32 v{tb}, s{sMASK}, v{ta}",
                f"v_add_f32 v{tb}, 0x3727c5ac, v{tb}", f"v_cvt_pk_bf16_f32 v{tb}, v{tb}, v{tb}", f"v_and_b32 v{tb}, s{sMASK}, v{tb}",
                f"v_sqrt_f32 v{tb}, v{tb}", f"v_lshlrev_b32 v{ta}, 16, v{ta}", f"v_cvt_pk_bf16_f32 v{tb}, v{tb}, v{tb}", f"v_and_b32 v{tb}, s{sMASK}, v{tb}",
                f"v_rcp_f32 v{r}, v{tb}", "s_nop 0", f"v_mul_f32_e64 v{c}, -v{ta}, v{r}"]
    def norm_dword(d, r, c, ta, tb):
        return [f"v_lshlrev_b32 v{ta}, 16, v{d}", f"v_and_b32 v{tb}, s{sMASK}, v{d}", f"v_fma_f32 v{ta}, v{ta}, v{r}, v{c}",
                f"v_fma_f32 v{tb}, v{tb}, v{r}, v{c}", f"v_cvt_pk_bf16_f32 v{d}, v{ta}, v{tb}"]
    H = [W(vm="halo")]
    for i in range(16):
        d = vHRAW + i
        H += [f"v_dot2_f32_bf16 v{hS[i&1]}, v{d}, v{vONE}, {'0' if i < 2 else 'v%d' % hS[i&1]}",
              f"v_dot2_f32_bf16 v{hQ[i&1]}, v{d}, v{d}, {'0' if i < 2 else 'v%d' % hQ[i&1]}"]
    H += ["s_nop 2", f"v_add_f32 v{hS[0]}, v{hS[0]}, v{hS[1]}", f"v_add_f32 v{hQ[0]}, v{hQ[0]}, v{hQ[1]}"]
    for sh in (8, 4, 2, 1):
        H += ["s_nop 0", f"v_add_f32_dpp v{hS[0]}, v{hS[0]}, v{hS[0]} row_ror:{sh} row_mask:0xf bank_mask:0xf",
              f"v_add_f32_dpp v{hQ[0]}, v{hQ[0]}, v{hQ[0]} row_ror:{sh} row_mask:0xf bank_mask:0xf"]
    H = [x for x in H]
    H += ln_scalars(hS[0], hQ[0], hr, hc, t0, t1)
    for i in range(16):
        d = vHRAW + i; ta = t0 + 2 * (i & 1)
        H += [f"v_lshlrev_b32 v{ta}, 16, v{d}", f"v_and_b32 v{ta+1}, s{sMASK}, v{d}",
              f"v_pk_fma_f32 v[{ta}:{ta+1}], v[{ta}:{ta+1}], v[{hr}:{hc}], v[{hr}:{hc}] op_sel:[0,0,1] op_sel_hi:[1,0,1]",
              f"v_cvt_pk_bf16_f32 v{d}, v{ta}, v{ta+1}"]
    def xread(s):
        return [W(vm=("xd", s))] + [("lg", ("xr", 4 * s + jj), f"ds_read_b128 v[{xn(4*s+jj)}:{xn(4*s+jj)+3}], v{vXR[jj]} offset:{7168 + 4096*s}") for jj in range(4)]
    def xstats(s):
        out = []
        for jj in range(4):
            k = 4 * s + jj
            out.append(W(lg=("xr", k)))
            for i in range(4):
                d = xn(k) + i; z = (k == 0 and i < 2)
                out += [f"v_dot2_f32_bf16 v{vS[i&1]}, v{d}, v{vONE}, {'0' if z else 'v%d' % vS[i&1]}",
                        f"v_dot2_f32_bf16 v{vQ[i&1]}, v{d}, v{d}, {'0' if z else 'v%d' % vQ[i&1]}"]
            if k in pureg:
                out += [f"v_lshlrev_b32 v{pureg[k]+i}, 16, v{xn(k)+i}" for i in range(4)]
                out += [f"v_and_b32 v{xn(k)+i}, s{sMASK}, v{xn(k)+i}" for i in range(4)]
        return out
    emit_all(A[:10] + halo_ld)
    g.stamp("dma0")
    emit_all(VD[14:] + A[10:])
    g.stamp("A")
    emit_all(B)
    g.stamp("B")
    assert not (w0 and is_vm(w0[0]) and False)
    w0 = [f"s_add_u32 m0, s{sRB}, 0"] + w0
    clr = [("vm", "clr", f"buffer_store_dwordx4 v[{vZ}:{vZ+3}], v{vZ+4}, {srd(SWS)}, 0 offen sc1")]
    mem = xdma(1) + xdma(2) + xdma(3) + xdma(4) + xdma(5)
    if o["w0_pos"] == 5: mem += w0 + xdma(6) + xdma(7)
    elif o["w0_pos"] == 6: mem += xdma(6) + w0 + xdma(7)
    else: mem += xdma(6) + xdma(7) + w0
    mem += clr
    nb = o["burst"]
    while nb:
        it = mem.pop(0); emit(it); nb -= is_vm(it)
    g.stamp("Bx")
    work = list(H) + xread(0)
    def must(key): return ("fn", lambda: [emit(mem.pop(0)) for _ in range(max([n_ + 1 for n_, it in enumerate(mem) if is_vm(it) and it[1] == key] + [0]))])
    for s in range(8):
        if s + 1 < 8: work += [must(("xd", s + 1))] + xread(s + 1)
        if s == 7:
            work.append(W(lg=("xr", 31)))
            work += [("lg", "hw", f"ds_write_b128 v{vHW[i]}, v[{vHRAW+4*i}:{vHRAW+4*i+3}] offset:35840") for i in range(4)]
        work += xstats(s)
        if s == 1: work.append(("fn", lambda: mem.extend(dma1(1))))
        work.append(("fn", lambda s=s: g.stamp(f"st{s}")))
    weave(work, mem, o["s_ratio"])
    while any(is_vm(m) and m[1] in ("clr", ("w1", 0)) for m in mem): emit(mem.pop(0))
    mem += dma1(2) + dma1(3) + dma1(4)
    g.stamp("x_done")
    e("s_nop 1")
    e(f"v_add_f32 v{vS[0]}, v{vS[0]}, v{vS[1]}"); e(f"v_add_f32 v{vQ[0]}, v{vQ[0]}, v{vQ[1]}")
    e(f"v_mov_b32 v{vS[1]}, v{vS[0]}"); e(f"v_mov_b32 v{vQ[1]}, v{vQ[0]}")
    g.wait(vm=max(ids["clr"], ids[("w1", 0)]), lg=ids["hw"])
    e("s_barrier")
    e(f"v_permlane32_swap_b32 v{vS[0]}, v{vS[1]}"); e(f"v_permlane32_swap_b32 v{vQ[0]}, v{vQ[1]}")

    frags = []
    for m in range(224):
        st, jj, b = m // 28, (m % 28) // 7, m % 7
        base = 7168 * SLOT[st] + (16 * (jj & 1)) * 224 + b * 32
        frags.append(dict(st=st, addr=vT1[jj >> 1], o0=base, o1=base + 4 * 224, kind="p1", k=4 * st + jj, b=b))
    for q in range(4):
        st = 8 + q
        for jj in range(8):
            for b in range(3):
                base = 7168 * SLOT[st] + (16 * (jj & 1)) * 192 + b * 64
                frags.append(dict(st=st, addr=vT2[jj >> 1], o0=base, o1=base + 4 * 192, kind="p2", k=8 * q + jj, b=b))
            if jj & 1:
                base = 7168 * SLOT[st]
                frags.append(dict(st=st, addr=vTH[jj >> 1], o0=base, o1=base + 4 * 192, kind="h", k=4 * q + (jj >> 1), b=0))
    NF = len(frags)
    frd = {}
    hiq = []; loq = []; ldsq = []
    memq = list(mem)
    cur = [0]; done = set(); lastvm = [-9]
    def add_hi(items, deadline):
        n = len(items); t_ = cur[0]
        new = [(t_ + (deadline - t_) * (j + 1) // n, it) for j, it in enumerate(items)]
        merged = []; a = b = 0
        while a < len(hiq) or b < len(new):
            if b >= len(new) or (a < len(hiq) and hiq[a][0] <= new[b][0]): merged.append(hiq[a]); a += 1
            else: merged.append(new[b]); b += 1
        hiq[:] = merged
    UA = [35840, 37888]; UC = [28672, 30720, 32768]; U0 = [0, 2048, 4096]; US = [14336, 16384, 18432]; U1 = [6144 + 2048 * i for i in range(4)]
    unit = {}
    for lst, us in (([0, 1], UA), ([2, 3], UA), ([4, 5, 6], UC), ([7, 8], UA), ([9, 10, 11], US), ([12, 13], UA), ([14, 15, 16], US), ([17, 18, 19], U0),
                    (range(20, 27), U1 + UC), (range(27, 35), UA + US + U0), ([35], U1)):
        for j, ks in enumerate(lst): unit[ks] = us[j]
    def w2reg(ks): return (160 + 8 * ks) if ks < 12 else (96 + 8 * (ks - 12))
    def w2dma(ks_list):
        out = []; i = 0
        while i < len(ks_list):
            ks = ks_list[i]; u = unit[ks]
            pair = (i + 1 < len(ks_list) and ks_list[i+1] == ks + 1 and unit[ks+1] == u + 2048 and (ks & 3) != 3)
            out.append(f"s_add_u32 m0, s{sRB}, {u}")
            if ks < 28:
                sr = SWD
                out += [f"s_lshl_b32 s{sT4}, s{sGK[ks>>2]}, 4", f"s_add_u32 s{sT4}, s{sT4}, s{sW2D}"]
                if ks & 3: out.append(f"s_add_u32 s{sT4}, s{sT4}, {(ks&3)*16384}")
            else:
                sr = SWO
                out.append(f"s_add_u32 s{sT4}, s{sW2O}, {(ks-28)*16384}")
            for j in range(4 if pair else 2):
                out.append(("vm", ("w2", ks + (j >> 1)), f"buffer_load_dwordx4 v{vDW[j]}, {srd(sr)}, s{sT4} offen offset:{1024*j} lds"))
            i += 2 if pair else 1
        return out
    def need(key):
        def f():
            while any(is_vm(it) and it[1] == key for it in memq): emit(memq.pop(0))
            g.wait(vm=ids[key])
        return ("fn", lambda: f())
    def w2toreg(ks):
        out = [need(("w2", ks))]
        for nb in range(2):
            r = w2reg(ks) + 4 * nb
            for sec in range(2):
                out.append(("lg", ("w2r", ks), f"ds_read_b64_tr_b16 a[{r+2*sec}:{r+2*sec+1}], v{vTW[nb]} offset:{unit[ks] + 1024*sec}"))
        return out
    def stage_w2(rd_list, next_list):
        for ks in rd_list: ldsq.extend(w2toreg(ks))
        def refill():
            memq.append(W(lg=("w2r", rd_list[-1]))); memq.extend(w2dma(next_list))
        ldsq.append(("fn", refill))
    def on_barrier(s):
        nxt = {1: 5, 2: 6, 3: 7, 4: 8, 6: 9, 7: 10}.get(s)
        if nxt is not None: push_front(memq, dma1(nxt) if nxt < 8 else dma2(nxt), after_w1=True)
        if s == 0:
            for j in range(16):
                ldsq.append(("lg", ("hx", j), f"ds_read_b128 a[{HX+4*j}:{HX+4*j+3}], v{vHR[j&1]} offset:{35840 + 128*(j>>1)}"))
            ldsq.append(("fn", lambda: done.add("hx")))
        if s == 2:
            assert "hx" in done and g.lg_done > ids[("hx", 15)]
            memq.extend(w2dma([0, 1]))
            memq.append(("vm", "dbgchk", f"buffer_load_dword v{vCK}, off, {srd(SDBG)}, s{sT5} sc1"))
        if s == 4: stage_w2([0, 1], [2, 3])
        if s == 5:
            memq.extend(w2dma([4, 5, 6]))
            def chk():
                g.wait(vm=ids["dbgchk"])
                e(f"v_readfirstlane_b32 s{sT0}, v{vCK}")
                e(f"s_cmp_lg_u32 s{sT0}, 0")
                e("s_cbranch_scc0 L_dbgspin")
                g.label("L_dbgok")
            add_hi([("fn", chk)], 28 * 7)
        if s == 6: stage_w2([2, 3], [7, 8])
        if s == 7:
            for ks in (4, 5, 6): ldsq.extend(w2toreg(ks))
            def refill():
                push_front(memq, [W(lg=("w2r", 6))] + dma2(11), after_w1=True); done.add("q11")
            ldsq.append(("fn", refill))
        if s == 8:
            memq.extend(w2dma([9, 10, 11]))
            stage_w2([7, 8], [12, 13])
        if s == 10:
            memq.extend(w2dma([17, 18, 19]))
            stage_w2([9, 10, 11], [14, 15, 16])
    def issue_frag(i):
        f = frags[i]; n = 0
        if i > 0 and frags[i - 1]["st"] != f["st"]:
            assert not any(is_vm(it) and it[1] == ("w1", f["st"]) for it in memq), f["st"]
            g.stamp(f"preB{f['st']-1}")
            n += g.wait(vm=ids[("w1", f["st"])]); e("s_barrier"); n += 1
            g.stamp(f"B{f['st']-1}")
            on_barrier(f["st"] - 1)
        r = FR + 4 * (i % 8)
        g.lg(f"ds_read_b64_tr_b16 a[{r}:{r+1}], v{f['addr']} offset:{f['o0']}")
        frd[i] = g.lg(f"ds_read_b64_tr_b16 a[{r+2}:{r+3}], v{f['addr']} offset:{f['o1']}")
        return n + 2
    def ln_items(k):
        out = []
        if k in pureg:
            for i in range(4):
                lo, d = pureg[k] + i, xn(k) + i
                out += [f"v_fma_f32 v{lo}, v{lo}, v{vR}, v{vC}", f"v_fma_f32 v{d}, v{d}, v{vR}, v{vC}"]
            out += [f"v_cvt_pk_bf16_f32 v{xn(k)+i}, v{pureg[k]+i}, v{xn(k)+i}" for i in range(4)]
        else:
            for i in range(4): out += norm_dword(xn(k) + i, vR, vC, vTmp[2 * (i & 1)], vTmp[2 * (i & 1) + 1])
        return out
    for i in range(D): issue_frag(i)
    e(f"v_add_f32 v{vS[0]}, v{vS[0]}, v{vS[1]}"); e(f"v_add_f32 v{vQ[0]}, v{vQ[0]}, v{vQ[1]}")
    emit_all(ln_scalars(vS[0], vQ[0], vR, vC, t0, t1))
    emit_all(ln_items(0))
    if o["touch"]:
        memq.append(("vm", "touch", f"buffer_load_dword v{vTouch}, v{vTouch}, {srd(SWO)}, 0 offen"))
    memq.append(("vm", "sig", f"buffer_store_dword v{vCK}, v{vSg}, {srd(SDBG)}, 0 offen sc1"))
    e("s_nop 0")
    g.stamp("mfma_start")
    for k in range(1, 32):
        its_ = ln_items(k)
        for j_, x in enumerate(its_): hiq.append((7 * (k - 1) + (6 * (j_ + 1) - 1) // len(its_), x))

    stq = []
    def epi_items(b):
        t, r = acc1(b); out = []
        P = r + 8
        if t == "a":
            base = ACCV + 16 * ((b - 3) % 3)
            ut = base + 12 if b < 6 else ACCV + 16
            out += [f"v_accvgpr_read_b32 v{base+i}, a{r+i}" for i in range(8)]
            out += [f"v_max_f32 v{base+i}, 0, v{base+i}" for i in range(8)]
            for hh in range(2):
                out += [f"v_accvgpr_read_b32 v{ut+i}, a{r+8+4*hh+i}" for i in range(4)]
                out += [f"v_mul_f32 v{base+4*hh+i}, v{base+4*hh+i}, v{ut+i}" for i in range(4)]
            P = base + 12 if b < 6 else base
            r = base
        else:
            out += [f"v_max_f32 v{r+i}, 0, v{r+i}" for i in range(8)]
            out += [f"v_mul_f32 v{r+i}, v{r+i}, v{r+8+i}" for i in range(8)]
        out += [f"v_cvt_pk_bf16_f32 v{P+i}, v{r+2*i}, v{r+2*i+1}" for i in range(4)]
        st = ([f"s_add_u32 s{sHST}, s{sHST}, 4096"] if b == 4 else []) + \
             [("vm", ("hst", b), f"buffer_store_dwordx4 v[{P}:{P+3}], v{vL16}, {srd(SWS)}, s{sHST} offen offset:{(b&3)*1024} sc1")]
        out.append(("fn", lambda: stq.extend(st)))
        return out
    def chkdone(key): assert key in ids, key
    flag_items = [f"v_mov_b32 v{vR}, 1"]
    vOne = vR
    def hflag():
        g.wait(vm=ids[("hst", 6)])
        g.vm(f"buffer_store_dword v{vOne}, v{vFl}, {srd(SWS)}, 0 offen sc1")
        g.stamp("hflag"); done.add("hflag")
    QA = PUB
    for i in range(NF):
        f = frags[i]
        used = 2; cur[0] = i
        if i % WB == 0: used += g.wait(lg=frd[min(i + WB - 1, NF - 1)])
        else: used += g.wait(lg=frd[i])
        fr = f"a[{FR + 4*(i%8)}:{FR + 4*(i%8) + 3}]"
        if f["kind"] == "p1":
            t, r = acc1(f["b"]); dst = rr(t, r, 16)
            e(f"v_mfma_f32_32x32x16_bf16 {dst}, {fr}, v[{xn(f['k'])}:{xn(f['k'])+3}], {dst if f['k'] else '0'}")
            cap = 8
        elif f["kind"] == "p2":
            dst = rr("v", QA + 16 * f["b"], 16)
            e(f"v_mfma_f32_32x32x16_bf16 {dst}, {fr}, v[{xn(f['k'])}:{xn(f['k'])+3}], {dst if f['k'] else '0'}")
            cap = 8
        else:
            dst = rr("v", vHA, 4)
            e(f"v_mfma_f32_16x16x32_bf16 {dst}, {fr}, a[{HX+4*f['k']}:{HX+4*f['k']+3}], {dst if f['k'] else '0'}")
            cap = 4
        if i + D < NF: used += issue_frag(i + D)
        if i == 224 + 2:
            for b in range(7): loq.extend(epi_items(b))
            loq.extend(flag_items)
        if i == 223: g.stamp("pass1_end")
        if ("hst", 6) in ids and "hst_gap" not in ids: ids["hst_gap"] = i; g.stamp("hst")
        if "hst_gap" in ids and "hflag" not in done and not loq and i >= ids["hst_gap"] + o["hflag_delay"]: hflag(); used += 2
        if stq and not any(is_vm(it) and it[1] in (("w1", 10), ("w1", 11))[:2 - o["st_early"]] for it in memq) and ("q11" in done or o["st_early"]):
            j_ = max([n_ + 1 for n_, it in enumerate(memq) if is_vm(it) and it[1][0] == "hst"] + [0])
            memq[j_:j_] = stq; stq[:] = []
        epi_first = (i >= 224 and (loq or stq))
        if ldsq and used < cap and (not epi_first or "q11" not in done):
            while ldsq and ldsq[0][0] == "fn": emit(ldsq.pop(0))
            if ldsq and (g.lg_n - g.lg_done) < 15:
                emit(ldsq.pop(0)); used += 1
            while ldsq and ldsq[0][0] == "fn" and ldsq[0][1].__name__ != "<lambda>": emit(ldsq.pop(0))
        late = sum(1 for d_, _ in hiq[:8] if d_ <= i)
        urgent = any(is_vm(it) and it[1][0] in ("w1", "hst") for it in memq)
        while memq and used + late < cap and (urgent or not epi_first):
            it = memq[0]
            if is_vm(it):
                if used + late + o["dmacost"] > cap + 1 or i < lastvm[0] + (o["dma_gap"] if i < 217 else o["dma_gap2"]): break
                memq.pop(0); emit(it); used += o["dmacost"]; lastvm[0] = i; break
            memq.pop(0); n0 = len(g.L); emit(it); used += len(g.L) - n0
        while hiq and (used < cap or hiq[0][0] <= i):
            it = hiq.pop(0)[1]; n0 = len(g.L); emit(it); used += len(g.L) - n0
        while loq and used < cap + (o["epi_over"] if cap == 8 else 0):
            it = loq.pop(0); n0 = len(g.L); emit(it); used += len(g.L) - n0
    assert not hiq
    emit_all(loq); loq[:] = []
    assert not stq
    while ldsq: emit(ldsq.pop(0))
    g.stamp("pass2_end")

    Q, K, V = QA, QA + 16, QA + 32
    KVO = 21504
    a0, a1, a2, a3 = 1, 2, 3, 4
    vKW, vVW, vVW2, vKR, vVR, vVR2, vHWa = 5, 6, 7, 8, 9, 11, 17
    vXo = 16; vPd = 22; vRD = 24
    sXR = sXO[0]
    P = []
    P += [f"v_and_b32 v{a0}, 31, v{lane}", f"v_lshrrev_b32 v{a1}, 5, v{lane}",
          f"s_lshl_b32 s{sT0}, s{sW}, 5", f"v_add_u32 v{a2}, s{sT0}, v{a0}", f"v_lshlrev_b32 v{a2}, 4, v{a2}",
          f"v_mul_u32_u24 v{a3}, 40960, v{a1}", f"v_add_u32 v{a3}, v{a3}, v{a2}", f"v_add_u32 v{vVW}, {KVO + 256}, v{a3}", f"v_add_u32 v{vVW2}, {RBc(2)}, v{vVW}",
          f"v_mul_u32_u24 v{a3}, {RBc(2)}, v{a1}", f"v_add_u32 v{a3}, v{a3}, v{a2}", f"v_add_u32 v{vKW}, {KVO + 4608 + 256}, v{a3}", f"v_add_u32 v{vKR}, {KVO + 4608 + 32}, v{a3}",
          f"v_mul_u32_u24 v{a3}, 2304, v{a1}", f"v_add_u32 v{a3}, v{a3}, v{a2}", f"v_add_u32 v{vVR}, {KVO + 32}, v{a3}", f"v_add_u32 v{vVR2}, {RBc(2)}, v{vVR}"]
    P += [f"v_cvt_pk_bf16_f32 v{K+j}, v{K+2*j}, v{K+2*j+1}" for j in range(8)]
    for j, (rg, off) in enumerate([(vVW, 0), (vVW2, 0), (vVW, 2304), (vVW2, 2304)]):
        P.append(("lg", "vw", f"ds_write_b128 v{rg}, v[{V+4*j}:{V+4*j+3}] offset:{off}"))
    P += [f"v_permlane32_swap_b32 v{K+j}, v{K+4+j}" for j in range(4)]
    P += [f"v_and_b32 v{a0}, 15, v{lane}", f"v_lshlrev_b32 v{a0}, 4, v{a0}", f"v_lshrrev_b32 v{a1}, 4, v{lane}"]
    P += [("lg", "kw", f"ds_write_b128 v{vKW}, v[{K}:{K+3}]"), ("lg", "kw", f"ds_write_b128 v{vKW}, v[{K+4}:{K+7}] offset:40960")]
    weave(P, memq, o["att_ratio"])
    g.wait(lg=g.lg_n - 8)
    e(f"s_cmp_ge_u32 s{sW}, 2"); e("s_cbranch_scc1 L_halo_v")
    e(f"v_and_b32 v{a2}, 1, v{a1}"); e(f"v_mul_u32_u24 v{a2}, 40960, v{a2}"); e(f"v_lshrrev_b32 v{a1}, 1, v{a1}"); e(f"v_lshl_add_u32 v{a2}, v{a1}, 3, v{a2}")
    e(f"s_mul_i32 s{sT0}, s{sW}, {RBc(2)}"); e(f"v_add3_u32 v{vHWa}, v{a2}, v{a0}, s{sT0}")
    e(f"v_cvt_pk_bf16_f32 v{vHA}, v{vHA}, v{vHA+1}"); e(f"v_cvt_pk_bf16_f32 v{vHA+1}, v{vHA+2}, v{vHA+3}")
    e(f"ds_write_b64 v{vHWa}, v[{vHA}:{vHA+1}] offset:{KVO + 4608}")
    e("s_branch L_halo_done")
    g.label("L_halo_v")
    e(f"v_mul_u32_u24 v{a2}, 40960, v{a1}"); e(f"v_lshrrev_b32 v{a1}, 1, v{a1}"); e(f"v_lshl_add_u32 v{a2}, v{a1}, 7, v{a2}")
    e(f"s_and_b32 s{sT0}, s{sW}, 1"); e(f"s_mul_i32 s{sT0}, s{sT0}, 2304"); e(f"v_add3_u32 v{vHWa}, v{a2}, v{a0}, s{sT0}")
    g.lg(f"ds_write_b128 v{vHWa}, v[{vHA}:{vHA+3}] offset:{KVO}")
    g.label("L_halo_done")
    P = [f"v_cvt_pk_bf16_f32 v{Q+j}, v{Q+2*j}, v{Q+2*j+1}" for j in range(8)]
    P += ["s_nop 0"]
    P += [f"v_permlane32_swap_b32 v{Q+j}, v{Q+4+j}" for j in range(4)]
    weave(P, memq, o["att_ratio"])
    if "hflag" not in done:
        while any(is_vm(it) and it[1][0] == "hst" for it in memq): emit(memq.pop(0))
        hflag()
    g.wait_all_lg()
    e("s_barrier")
    g.stamp("attn_bar")
    KB = 128; VB = 192
    AT = []
    for w in range(8):
        for p in range(2):
            AT.append(("lg", ("kr", w), f"ds_read_b128 v[{KB+8*w+4*p}:{KB+8*w+4*p+3}], v{vKR} offset:{(14-2*w)*16 + 40960*p}"))
    AT += [f"s_lshl_b32 s{sXR}, s{sM2}, 16", f"s_lshr_b32 s{sT0}, s{sW}, 1", f"s_lshl_b32 s{sT0}, s{sT0}, 15", f"s_add_u32 s{sXR}, s{sXR}, s{sT0}",
           f"s_lshl_b32 s{sT0}, s{sNT}, 7", f"s_add_u32 s{sXR}, s{sXR}, s{sT0}", f"s_and_b32 s{sT0}, s{sW}, 1", f"s_lshl_b32 s{sT0}, s{sT0}, 6", f"s_add_u32 s{sXR}, s{sXR}, s{sT0}"]
    AT += [f"v_lshrrev_b32 v{a0}, 2, v{lane}", f"v_lshlrev_b32 v{a0}, 10, v{a0}", f"v_lshrrev_b32 v{a1}, 4, v{lane}", f"v_xor_b32 v{a1}, v{a1}, v{lane}",
           f"v_and_b32 v{a1}, 3, v{a1}", f"v_lshl_add_u32 v{vRD}, v{a1}, 4, v{a0}"]
    RU = [20480, 34816]
    resid = [f"s_add_u32 m0, s{sRB}, {RU[0]}", ("vm", "res", f"buffer_load_dwordx4 v{vRD}, {srd(SX)}, s{sXR} offen lds"),
             f"s_add_u32 m0, s{sRB}, {RU[1]}", f"s_add_u32 s{sT4}, s{sXR}, 16384", ("vm", "res", f"buffer_load_dwordx4 v{vRD}, {srd(SX)}, s{sT4} offen lds")]
    hpoll = [("vm", "hp", f"buffer_load_dword v{vPd}, v{vPo}, {srd(SWS)}, 0 offen sc1")]
    LG = 32
    def vread(w):
        return [("lg", ("vr", w), f"ds_read_b128 v[{VB+16*(w&3)+4*dq}:{VB+16*(w&3)+4*dq+3}], v{vVR if dq < 2 else vVR2} offset:{(14-2*w)*16 + 40960*(dq&1)}") for dq in range(4)]
    QK = []
    for w2 in range(0, 8, 2):
        QK.append(W(lg=("kr", w2 + 1)))
        for j in range(8):
            for w in (w2, w2 + 1):
                QK.append(f"v_dot2_f32_bf16 v{LG+w}, v{Q+j}, v{KB+8*w+j}, {'0' if j == 0 else 'v%d' % (LG+w)}")
        QK += w2toreg(12 + w2) + w2toreg(13 + w2)
    for w in range(3): QK += vread(w)
    SMX = [f"s_lshl_b32 s{sT0}, s{sMT}, 7", f"s_lshl_b32 s{sT1}, s{sW}, 5", f"s_add_u32 s{sT0}, s{sT0}, s{sT1}",
           f"v_and_b32 v{a0}, 31, v{lane}", f"v_add_u32 v{a0}, s{sT0}, v{a0}", f"v_mov_b32 v{a1}, 0xcf6e6b28"]
    sMK = [None] + [f"s[{38+2*j}:{39+2*j}]" for j in range(1, 7)] + ["vcc"]
    SMX += [f"v_cmp_le_u32 {sMK[w]}, {2*w}, v{a0}" for w in range(7, 0, -1)]
    SMX += [f"v_cndmask_b32 v{LG+w}, v{a1}, v{LG+w}, {sMK[w]}" for w in range(7, 0, -1)]
    SMX += [f"v_max3_f32 v{a2}, v{LG}, v{LG+1}, v{LG+2}", f"v_max3_f32 v{a3}, v{LG+3}, v{LG+4}, v{LG+5}",
            f"v_max3_f32 v{a2}, v{a2}, v{LG+6}, v{LG+7}", f"s_mov_b32 s{sT0}, 0x3eb8aa3b", f"v_max_f32 v{a2}, v{a2}, v{a3}"]
    SMX += [f"v_sub_f32 v{LG+w}, v{LG+w}, v{a2}" for w in range(8)]
    SMX += [f"v_mul_f32 v{LG+w}, s{sT0}, v{LG+w}" for w in range(8)]
    SMX += [f"v_exp_f32 v{LG+w}, v{LG+w}" for w in range(8)]
    SMX += vread(3)
    SM = 40
    SMX += [f"v_pk_add_f32 v[{SM}:{SM+1}], v[{LG}:{LG+1}], v[{LG+2}:{LG+3}]", f"v_pk_add_f32 v[{SM+2}:{SM+3}], v[{LG+4}:{LG+5}], v[{LG+6}:{LG+7}]",
            f"v_pk_add_f32 v[{SM}:{SM+1}], v[{SM}:{SM+1}], v[{SM+2}:{SM+3}]", f"v_add_f32 v{SM}, v{SM}, v{SM+1}", f"v_rcp_f32 v{SM}, v{SM}", "s_nop 0"]
    SMX += [f"v_pk_mul_f32 v[{LG+2*j}:{LG+2*j+1}], v[{LG+2*j}:{LG+2*j+1}], v[{SM}:{SM+1}] op_sel_hi:[1,0]" for j in range(4)]
    O = 48
    AV = []
    for w in range(8):
        AV.append(W(lg=("vr", w)))
        pw = LG + (w & ~1); sel = w & 1
        for j in range(8):
            r = VB + 16 * (w & 3) + 2 * j
            if w == 0: AV.append(f"v_pk_mul_f32 v[{O+2*j}:{O+2*j+1}], v[{r}:{r+1}], v[{pw}:{pw+1}] op_sel:[0,{sel}] op_sel_hi:[1,{sel}]")
            else: AV.append(f"v_pk_fma_f32 v[{O+2*j}:{O+2*j+1}], v[{r}:{r+1}], v[{pw}:{pw+1}], v[{O+2*j}:{O+2*j+1}] op_sel:[0,{sel},0] op_sel_hi:[1,{sel},1]")
        if w + 4 < 8: AV += vread(w + 4)
    OP = 64
    dst = {0: 0, 1: 1, 4: 2, 5: 3, 2: 4, 3: 5, 6: 6, 7: 7}
    AV += [f"v_cvt_pk_bf16_f32 v{OP+dst[p]}, v{O+2*p}, v{O+2*p+1}" for p in range(8)]
    AV += [f"s_lshl_b32 s{sT0}, s{sSL}, 11", f"s_add_u32 s{sT0}, s{sT0}, s{sTb}"]
    AV += [f"v_permlane32_swap_b32 v{OP+j}, v{OP+4+j}" for j in range(4)]
    def hreg(n): return ("a", 4 * n) if n < 16 else ("v", 96 + 4 * (n - 16)) if n < 56 else ("a", 4 * (n - 56))
    sHA, sHB = sXO[1], sXO[2]
    def hload(ks):
        out = []
        if ks < 28:
            if ks % 4 == 0: out += [f"s_add_u32 s{sHA}, s{sH0}, s{sGK[ks>>2]}", f"s_add_u32 s{sHB}, s{sH1}, s{sGK[ks>>2]}"]
            so = (sHA, sHB)
        else:
            if ks == 32: out += [f"s_add_u32 s{sO0}, s{sO0}, 4096", f"s_add_u32 s{sO1}, s{sO1}, 4096"]
            so = (sO0, sO1)
        for i in range(2):
            t, r = hreg(2 * ks + i)
            out.append(("vm", ("h", 2 * ks + i), f"buffer_load_dwordx4 {t}[{r}:{r+3}], v{vL16}, {srd(SWS)}, s{so[i]} offen offset:{(ks&3)*1024} sc1"))
        return out
    def hcheck():
        while any(is_vm(it) and it[1] == "hp" for it in memq): emit(memq.pop(0))
        g.wait(vm=ids["hp"])
        e(f"v_cmp_ne_u32 vcc, 1, v{vPd}"); e("s_nop 4"); e("s_cbranch_vccnz L_hspin")
        g.label("L_hok")
        g.stamp("hpoll_ok")
        hl = []
        for ks in range(8): hl += hload(ks)
        memq[0:0] = hl
    R_ = o["att_ratio"]
    memq.extend(w2dma(list(range(20, 27))))
    if o["hp_issue"] == 0: memq[0:0] = hpoll
    weave(AT, memq, R_)
    push_front(memq, resid)
    if o["hp_issue"] == 1: memq[0:0] = hpoll
    weave(QK, memq, R_)
    memq.append(W(lg=("w2r", 19))); memq.extend(w2dma(list(range(27, 35))))
    if o["hp_issue"] == 2: memq[0:0] = hpoll
    if o["hp_check"] == 1: hcheck()
    weave(SMX, memq, R_)
    if o["hp_check"] == 2: hcheck()
    weave(AV, memq, R_)
    g.vm(f"buffer_store_dwordx4 v[{OP}:{OP+3}], v{vL16}, {srd(SWS)}, s{sT0} offen sc1")
    ids["ost"] = g.vm(f"buffer_store_dwordx4 v[{OP+4}:{OP+7}], v{vL16}, {srd(SWS)}, s{sT0} offen offset:1024 sc1")
    g.stamp("attn_end")
    if o["hp_check"] == 3: hcheck()
    ACC = 32; XR = 72
    e(f"v_and_b32 v{a0}, 15, v{lane}"); e(f"v_lshlrev_b32 v{a0}, 6, v{a0}"); e(f"v_bfe_u32 v{a1}, v{lane}, 4, 1"); e(f"v_mul_u32_u24 v{a1}, {RU[1]-RU[0]}, v{a1}")
    e(f"v_add3_u32 v{a0}, v{a0}, v{a1}, s{sRB}"); e(f"v_lshrrev_b32 v{a1}, 5, v{lane}"); e(f"v_lshl_add_u32 v{a0}, v{a1}, 3, v{a0}")
    e(f"v_bfe_u32 v{a1}, v{lane}, 2, 2"); e(f"v_lshl_add_u32 v{a0}, v{a1}, 4, v{a0}")
    for q in range(1, 4): e(f"v_xor_b32 v{a0+q}, {16*q}, v{a0}")
    assert not any(is_vm(it) and it[1] == "res" for it in memq)
    g.wait(vm=ids["res"])
    for q in range(4): ids["resr"] = g.lg(f"ds_read_b64 v[{XR+2*q}:{XR+2*q+1}], v{a0+q} offset:{RU[0]}")
    while any(is_vm(it) and it[1][0] == "h" for it in memq): emit(memq.pop(0))
    g.wait(lg=ids["resr"])
    for q in range(4):
        for h in range(2):
            e(f"v_lshlrev_b32 v{ACC+4*q+2*h}, 16, v{XR+2*q+h}"); e(f"v_and_b32 v{ACC+4*q+2*h+1}, s{sMASK}, v{XR+2*q+h}")
    e("s_nop 1")
    g.stamp("p2_start")
    FR2 = 64
    def w2frag(ks):
        if ks < 20: return
        emit(need(("w2", ks)))
        for nb in range(2):
            r = FR2 + 8 * (ks % 4) + 4 * nb
            for sec in range(2):
                ids[("w2l", ks)] = g.lg(f"ds_read_b64_tr_b16 a[{r+2*sec}:{r+2*sec+1}], v{vTW[nb]} offset:{unit[ks] + 1024*sec}")
    vRW = 1; vRR = [2, 3, 4]
    fin = [f"v_add_u32 v{vRW}, s{sRB}, v{vL16}"]
    for s in range(1, 4):
        fin += [f"s_xor_b32 s{sT0}, s{sW}, {s}", f"s_mul_i32 s{sT1}, s{sT0}, 40960", f"s_lshr_b32 s{sT0}, s{sT0}, 1", f"s_lshl_b32 s{sT0}, s{sT0}, 7",
                f"s_add_u32 s{sT0}, s{sT0}, s{sT1}", f"v_add_u32 v{vRR[s-1]}, s{sT0}, v{vL16}"]
    fin += [f"v_and_b32 v5, 31, v{lane}", "v_lshlrev_b32 v5, 10, v5", f"v_lshrrev_b32 v6, 5, v{lane}", f"v_lshl_add_u32 v{vXo}, v6, 4, v5"]
    Lk = o["L"]; nxt = 8; oflag = False
    pend = []
    def one_vm(q):
        while q:
            it = q.pop(0); emit(it)
            if is_vm(it): return True
        return False
    for ks in range(36):
        if ks == o["op_check"]:
            while any(is_vm(it) and it[1] == "op" for it in pend): emit(pend.pop(0))
            g.wait(vm=ids["op"])
            e(f"v_cmp_ne_u32 vcc, 1, v{vPd}"); e("s_nop 4"); e("s_cbranch_vccnz L_ospin")
            g.label("L_ook")
            g.stamp("opoll_ok")
        while nxt < 36 and nxt <= ks + Lk and (nxt < 28 or ks >= o["op_check"]):
            assert nxt < 28 or nxt - 28 < ks
            pend += hload(nxt); nxt += 1
        if ks == o["op_issue"]:
            pend.append(("vm", "op", f"buffer_load_dword v{vPd}, v{vPo}, {srd(SWS)}, 0 offen offset:128 sc1"))
        if ks == 21: memq.extend(w2dma([35]))
        while any(is_vm(it) and it[1] == ("h", 2 * ks + 1) for it in pend): emit(pend.pop(0))
        g.wait(vm=ids[("h", 2 * ks + 1)], lg=ids.get(("w2l", ks)))
        if not oflag and g.vm_done > ids["ost"]:
            pend.insert(0, ("vm", "of", f"buffer_store_dword v{vOne}, v{vFl}, {srd(SWS)}, 0 offen offset:128 sc1")); oflag = True
            g.stamp("oflag")
        g.stamp(f"k{ks}")
        order = [(0, 0), (0, 1), (1, 0), (1, 1)] if ks < 35 else [(0, 1), (1, 0), (1, 1), (0, 0)]
        for n_, (i, j) in enumerate(order):
            t, r = hreg(2 * ks + i)
            wr = (w2reg(ks) + 4 * j) if ks < 20 else (FR2 + 8 * (ks % 4) + 4 * j)
            d = f"v[{ACC+32*i+16*j}:{ACC+32*i+16*j+15}]"
            e(f"v_mfma_f32_32x32x16_bf16 {d}, a[{wr}:{wr+3}], {t}[{r}:{r+3}], {d if (ks or (i == 0 and j == 0)) else '0'}")
            if n_ == 0 and ks + 2 < 36: w2frag(ks + 2)
            if n_ in (1, 3): one_vm(pend) or one_vm(memq)
            elif n_ == 2: one_vm(memq) or one_vm(pend)
            elif ks + 2 < 20 or ks + 2 >= 36: one_vm(pend)
            if ks >= 24:
                for _ in range(3):
                    if fin: e(fin.pop(0))
    assert not pend and not memq
    assert oflag and not fin and o["op_issue"] < o["op_check"]
    g.stamp("p2_end")
    e("s_nop 8")
    for s in range(1, 4):
        for q in range(4):
            g.lg(f"ds_write_b128 v{vRW}, v[{ACC+16*s+4*q}:{ACC+16*s+4*q+3}] offset:{4096*s + 1024*q}")
    g.wait_all_lg()
    e("s_barrier")
    RD = 96
    for s in range(1, 4):
        for q in range(4):
            ids[("rr", s, q)] = g.lg(f"ds_read_b128 v[{RD+16*(s-1)+4*q}:{RD+16*(s-1)+4*q+3}], v{vRR[s-1]} offset:{4096*s + 1024*q}")
    for s in range(1, 4):
        for q in range(4):
            g.wait(lg=ids[("rr", s, q)])
            for h in range(2):
                a = ACC + 4 * q + 2 * h; b = RD + 16 * (s - 1) + 4 * q + 2 * h
                e(f"v_pk_add_f32 v[{a}:{a+1}], v[{a}:{a+1}], v[{b}:{b+1}]")
    PK = 48
    for j in range(8): e(f"v_cvt_pk_bf16_f32 v{PK+j}, v{ACC+2*j}, v{ACC+2*j+1}")
    e("s_nop 0")
    for p in range(2):
        e(f"v_permlane32_swap_b32 v{PK+4*p}, v{PK+4*p+2}"); e(f"v_permlane32_swap_b32 v{PK+4*p+1}, v{PK+4*p+3}")
    for p in range(2):
        g.vm(f"buffer_store_dwordx4 v[{PK+4*p}:{PK+4*p+3}], v{vXo}, {srd(SOUT)}, s{sXR} offen offset:{32*p}")
    if diag:
        g.stamp("end")
        e("s_memrealtime s[70:71]")
        e("s_waitcnt lgkmcnt(0) vmcnt(0)")
        e(f"s_lshl_b32 s{sT0}, s{sM2}, 3"); e(f"s_add_u32 s{sT0}, s{sT0}, s{sNT}"); e(f"s_lshl_b32 s{sT0}, s{sT0}, 2"); e(f"s_add_u32 s{sT0}, s{sT0}, s{sW}"); e(f"s_lshl_b32 s{sT0}, s{sT0}, 6"); e(f"s_add_u32 s{sT0}, s{sT0}, {0xB00000}")
        e(f"s_mov_b32 s{SWS+2}, 0x1000000")
        for i, r in [(i, ST0 + 2 * i) for i in range(len(g.stamp_names))] + [(13, 100), (14, 101), (15, 70)]:
            e(f"v_mov_b32 v1, s{r}"); e(f"v_mov_b32 v2, {4*i}")
            e(f"buffer_store_dword v1, v2, {srd(SWS)}, s{sT0} offen")
        e("s_waitcnt vmcnt(0)")
    g.label("L_end")
    e("s_endpgm")
    g.label("L_dbgspin")
    e(f"s_add_u32 s{sSPIN}, s{sSPIN}, 1"); e(f"s_cmp_gt_u32 s{sSPIN}, {SPIN_MAX}"); e("s_cbranch_scc1 L_dbgok")
    e("s_sleep 2")
    e(f"buffer_load_dword v{vCK}, off, {srd(SDBG)}, s{sT5} sc1")
    e("s_waitcnt vmcnt(0)")
    e(f"v_readfirstlane_b32 s{sT0}, v{vCK}")
    e(f"s_cmp_lg_u32 s{sT0}, 0")
    e("s_cbranch_scc0 L_dbgspin")
    e("s_branch L_dbgok")
    for nm, off, back in (("L_hspin", 0, "L_hok"), ("L_ospin", 128, "L_ook")):
        g.label(nm)
        e(f"s_add_u32 s{sSPIN}, s{sSPIN}, 1"); e(f"s_cmp_gt_u32 s{sSPIN}, {SPIN_MAX}"); e(f"s_cbranch_scc1 {back}")
        e(f"buffer_load_dword v{vPd}, v{vPo}, {srd(SWS)}, 0 offen offset:{off} sc1")
        e("s_waitcnt vmcnt(0)")
        e(f"v_cmp_ne_u32 vcc, 1, v{vPd}"); e("s_nop 4")
        e(f"s_cbranch_vccnz {nm}")
        e(f"s_branch {back}")
    g.label("L_codeend")
    hdr = open("cdna_kernels/" + NAME + ".s.ref").read().split("; Override")[0]
    txt = hdr + "; @launch grid=(256,1,1) block=(256,1,1) lds=163840\n"
    txt += f""".amdgcn_target "amdgcn-amd-amdhsa--gfx950"
.text
.globl {NAME}_kernel
.p2align 8
.type {NAME}_kernel,@function
{NAME}_kernel:
""" + "\n".join(g.L) + f"""
.section .rodata,"a"
.p2align 6
.amdhsa_kernel {NAME}_kernel
  .amdhsa_next_free_vgpr 512
  .amdhsa_next_free_sgpr 102
  .amdhsa_accum_offset 256
  .amdhsa_group_segment_fixed_size 0
  .amdhsa_kernarg_size 80
  .amdhsa_user_sgpr_count 2
  .amdhsa_user_sgpr_kernarg_segment_ptr 1
  .amdhsa_system_sgpr_workgroup_id_x 1
.end_amdhsa_kernel
"""
    return txt, g.stamp_names

if __name__ == "__main__":
    import json
    diag = "--diag" in sys.argv
    args = [a for a in sys.argv[1:] if not a.startswith("--")]
    opt = json.loads(args[1]) if len(args) > 1 else None
    txt, names = gen(diag, opt)
    open(args[0] if args else "cdna_kernels/" + NAME + ".s", "w").write(txt)
    print("stamps:", names, "lines:", txt.count("\n"))
```

```python
import sys

NAME = "parallel_sum__sliding_local_dilated__glu_gated_reglu__prompt"
FL = 0xA00000
WS_BYTES = FL + 0x10000
OOB = 0x7ff00000
NSTAMP = 9
ST0 = 82

class G:
    def __init__(self, diag=False, stamps=None):
        self.L = []
        self.vm_n = 0; self.vm_done = 0
        self.lg_n = 0; self.lg_done = 0
        self.smem = False
        self.diag = diag
        self.want = stamps
        self.stamp_names = []
    def e(self, s): self.L.append("    " + s)
    def label(self, s): self.L.append(s + ":")
    def vm(self, s):
        if " lds" in s and self.L[-1].split()[:2] in (["s_add_u32", "m0,"], ["s_mov_b32", "m0,"]): self.e("s_nop 0")
        self.e(s); self.vm_n += 1; return self.vm_n - 1
    def lg(self, s):
        if self.lg_n - self.lg_done >= 15: self.wait(lg=self.lg_done)
        self.e(s); self.lg_n += 1
        return self.lg_n - 1
    def wait(self, vm=None, lg=None):
        parts = []
        if vm is not None and vm >= self.vm_done:
            n = self.vm_n - 1 - vm
            parts.append(f"vmcnt({min(n, 63)})"); self.vm_done = vm + 1
        if lg is not None and lg >= self.lg_done:
            n = self.lg_n - 1 - lg
            if self.smem:
                n = 0; self.smem = False; self.lg_done = self.lg_n
            else:
                self.lg_done = lg + 1
            assert n <= 15
            parts.append(f"lgkmcnt({n})")
        if parts:
            self.e("s_waitcnt " + " ".join(parts)); return 1
        return 0
    def wait_all_lg(self):
        self.e("s_waitcnt lgkmcnt(0)"); self.lg_done = self.lg_n; self.smem = False
    def stamp(self, name):
        if not self.diag or (self.want and name not in self.want): return
        n = len(self.stamp_names)
        assert n < NSTAMP, name
        self.e(f"s_memtime s[{ST0+2*n}:{ST0+2*n+1}]"); self.smem = True
        self.stamp_names.append(name)

def RBc(x): return 40960 * x + 128 * (x >> 1)

DEFAULT_STAMPS = ["start", "x_done", "mfma_start", "pass1_end", "pass2_end", "attn_end", "p2_start", "p2_end", "end"]

def gen(diag=False, opt=None):
    o = dict(rotm=8, D=7, WB=3, dmacost=2, L=6, op_issue=16, op_check=21, hflag_delay=36, rot2=2, codepf=1, stamps=DEFAULT_STAMPS,
             hp_issue=2, hp_check=2, att_ratio=12, epi_over=4, w0_first=2, rowrot=1, s_ratio=15, burst=5, w0_pos=7, dma_gap=2, dma_gap2=2, st_early=1, touch=1)
    if opt: o.update(opt)
    g = G(diag, o["stamps"]); e = g.e
    sW, sMT, sSL, sROT, sM2, sNT, sRB, sMASK = 3, 4, 5, 6, 7, 60, 61, 62
    SX, SW1, SQKV, SWD, SWO, SWS, SOUT, SDBG = 8, 12, 16, 20, 24, 28, 32, 36
    sP1 = [40 + i for i in range(8)]
    sP2 = [48 + i for i in range(4)]
    sXO = [64 + i for i in range(8)]
    sT0, sT1, sT2, sT3 = 72, 73, 74, 0
    sHST = 52; sW2D = 53; sW2O = 54; sH0 = 55; sH1 = 56; sO0 = 57; sO1 = 58; sTb = 59; sT4 = 63; sT5 = 1
    sGK = [75 + i for i in range(7)]
    sDL = 101 if not diag else 2
    sSPIN = 100; SPIN_MAX = 100000
    def srd(r): return f"s[{r}:{r+3}]"
    XN = 128; PUB = 80; ACCV = 32
    def xn(k): return XN + 4 * k
    vL16 = 0
    vD2 = [1, 2, 3]
    vT2 = [4, 5, 6, 7]
    vT1 = [8, 9]
    vR, vC = 10, 11
    vTmp = [12, 13, 14, 15]
    vHA = 12
    vHR = [16, 17]
    vDW = [18, 19, 20, 21]
    vCK = 22
    lane = 23
    vTH = [24, 25, 26, 27]
    vTW = [28, 29]
    vFl = 30; vPo = 31
    vD1 = [120 + i for i in range(7)]
    vSg = 127
    vTouch = 119
    PU = [0, 3, 7, 10, 14, 17, 21, 25, 29]
    pureg = {k: PUB + 4 * i for i, k in enumerate(PU)}
    def acc1(b): return ("v", ACCV + 16 * b) if b < 3 else ("a", 16 * (b - 3))
    def rr(t, r, n): return f"{t}[{r}:{r+n-1}]"
    FR = 64
    HX = 96
    D = o["D"]; WB = o["WB"]
    ids = {}

    def emit(it):
        if isinstance(it, str): e(it)
        elif it[0] == "vm": ids[it[1]] = g.vm(it[2])
        elif it[0] == "lg": ids[it[1]] = g.lg(it[2])
        elif it[0] == "fn": it[1]()
    def emit_all(items):
        for it in items: emit(it)
    def is_vm(it): return (not isinstance(it, str)) and it[0] == "vm"
    def weave(work, mem, ratio):
        n = 0
        for j, it in enumerate(work):
            n0 = len(g.L); emit(it); n += len(g.L) - n0
            nx = work[j + 1] if j + 1 < len(work) else None
            if n >= ratio and not (isinstance(nx, str) and nx.startswith("s_cselect")):
                n = 0
                while mem:
                    m = mem.pop(0); emit(m)
                    if is_vm(m): break
    def push_front(q, items, after_w1=False):
        j = 0
        if after_w1:
            for n_, it in enumerate(q):
                if is_vm(it) and it[1][0] == "w1": j = n_ + 1
        while j < len(q) and not (isinstance(q[j], str) and q[j].startswith("s_add_u32 m0")): j += 1
        q[j:j] = items
    W = lambda **kw: ("fn", lambda: g.wait(**{k: (ids[v] if not isinstance(v, int) else v) for k, v in kw.items()}))

    e("s_cmp_ge_u32 s2, 256")
    e("s_cbranch_scc1 L_end")
    g.stamp("start")
    if diag: e("s_memrealtime s[70:71]"); e("s_waitcnt lgkmcnt(0)"); e("s_mov_b32 s101, s70")
    for r, off in ((SX, 0), (SQKV, 8), (SWO, 16), (SWD, 48), (SOUT, 56), (SDBG, 64), (SWS, 72)):
        e(f"s_load_dwordx2 s[{r}:{r+1}], s[0:1], {off}")
    e("s_load_dwordx4 s[40:43], s[0:1], 32")
    e("v_lshrrev_b32 v1, 6, v0")
    e(f"v_and_b32 v{lane}, 63, v0")
    e(f"v_readfirstlane_b32 s{sW}, v1")
    e(f"s_and_b32 s{sT0}, s2, 7"); e(f"s_lshr_b32 s{sT1}, s2, 3")
    vHRAW = 32
    vXD = [48, 49, 50, 51]; vXR = [52, 53, 54, 55]; vHW = [56, 57, 58, 59]
    vS = [60, 61]; vQ = [62, 63]; vHo = 64; vONE = 65; hS = [77, 78]; hQ = [79, 64]
    t0, t1, t2, t3 = 66, 67, 68, 69
    hr, hc = 70, 71
    vZ = 72
    if o["codepf"]:
        e("s_getpc_b64 s[44:45]"); g.label("L_pc")
        e(f"s_mov_b32 s46, L_codeend-L_pc"); e("s_mov_b32 s47, 0x20000")
        e(f"s_lshl_b32 s{sT2}, s{sT1}, 2"); e(f"s_add_u32 s{sT2}, s{sT2}, s{sW}"); e(f"s_lshl_b32 s{sT2}, s{sT2}, 8")
        e(f"v_lshlrev_b32 v{t0}, 7, v{lane}"); e(f"v_cmp_gt_u32 vcc, 2, v{lane}"); e(f"v_add_u32 v{t0}, s{sT2}, v{t0}"); e(f"v_mov_b32 v{t1}, {OOB}")
        e(f"v_cndmask_b32 v{t0}, v{t1}, v{t0}, vcc")
        g.vm(f"buffer_load_dword v{vC}, v{t0}, s[44:47], 0 offen")
    e(f"s_lshr_b32 s{sMT}, s{sT0}, 1"); e(f"s_lshl_b32 s{sMT}, s{sMT}, 2"); e(f"s_and_b32 s{sT2}, s{sT1}, 3"); e(f"s_add_u32 s{sMT}, s{sMT}, s{sT2}")
    e(f"s_and_b32 s{sSL}, s{sT0}, 1"); e(f"s_lshl_b32 s{sSL}, s{sSL}, 3"); e(f"s_lshr_b32 s{sNT}, s{sT1}, 2"); e(f"s_add_u32 s{sSL}, s{sSL}, s{sNT}")
    e(f"s_lshl_b32 s{sM2}, s{sT0}, 2"); e(f"s_add_u32 s{sM2}, s{sM2}, s{sT2}")
    if o["rotm"] == 4:
        e(f"s_and_b32 s{sROT}, s{sMT}, 1"); e(f"s_lshl_b32 s{sROT}, s{sROT}, 2")
    elif o["rotm"] == 2:
        e(f"s_lshl_b32 s{sROT}, s{sT2}, 1")
    elif o["rotm"] == 8:
        e(f"s_lshr_b32 s{sROT}, s{sMT}, 2"); e(f"s_lshl_b32 s{sROT}, s{sROT}, 1")
    elif o["rotm"] == 1:
        e(f"s_lshl_b32 s{sROT}, s{sT2}, 1"); e(f"s_bfe_u32 s{sT2}, s{sMT}, 0x10002"); e(f"s_add_u32 s{sROT}, s{sROT}, s{sT2}")
    else:
        e(f"s_mov_b32 s{sROT}, 0")
    e(f"s_add_u32 s{sROT}, s{sROT}, s{sSL}"); e(f"s_and_b32 s{sROT}, s{sROT}, 7")
    sJ8 = sH0
    if o["rowrot"]: e(f"s_and_b32 s{sJ8}, s{sMT}, 3"); e(f"s_lshl_b32 s{sJ8}, s{sJ8}, 3")
    else: e(f"s_mov_b32 s{sJ8}, 0")
    e(f"s_mul_i32 s{sRB}, s{sW}, 40960"); e(f"s_lshr_b32 s{sT0}, s{sW}, 1"); e(f"s_lshl_b32 s{sT0}, s{sT0}, 7"); e(f"s_add_u32 s{sRB}, s{sRB}, s{sT0}")
    e(f"s_lshl_b32 s{sXO[0]}, s{sROT}, 7")
    e(f"s_lshl_b32 s{sTb}, s{sMT}, 17"); e(f"s_lshl_b32 s{sT0}, s{sW}, 15"); e(f"s_add_u32 s{sTb}, s{sTb}, s{sT0}")
    e(f"s_mov_b32 s{SX+2}, 2097152"); e(f"s_mov_b32 s{SX+3}, 0x20000")
    e(f"v_lshlrev_b32 v{vL16}, 4, v{lane}")
    e(f"v_lshrrev_b32 v{t0}, 4, v{lane}")
    e(f"v_lshrrev_b32 v{t2}, 3, v{lane}"); e(f"v_lshlrev_b32 v{t2}, 10, v{t2}"); e(f"v_and_b32 v{t3}, 7, v{lane}"); e(f"v_xor_b32 v{t3}, v{t3}, v{t0}")
    e(f"v_add_u32 v{t2}, s{sTb}, v{t2}")
    e(f"v_lshl_add_u32 v{vXD[0]}, v{t3}, 4, v{t2}"); e(f"v_xor_b32 v{vXD[1]}, 64, v{vXD[0]}")
    e(f"v_add_u32 v{vXD[2]}, {2*7168}, v{vXD[0]}"); e(f"v_add_u32 v{vXD[3]}, {3*7168}, v{vXD[1]}"); e(f"v_add_u32 v{vXD[1]}, 7168, v{vXD[1]}")
    e(f"s_and_b32 s{sT1}, s{sW}, 1"); e(f"s_mul_i32 s{sT1}, s{sT1}, {32*3584}"); e(f"s_mul_i32 s{sT2}, s{sSL}, 224"); e(f"s_add_u32 s{sT1}, s{sT1}, s{sT2}")
    e(f"s_add_u32 s{sT1}, s{sT1}, 4096")
    e(f"v_add_u32 v{t2}, s{sT1}, v{vL16}"); e(f"s_movk_i32 s{sT2}, 3584")
    VD = []
    for i in range(7):
        VD += [f"v_add_u32 v{t0}, {64*i}, v{lane}", f"v_mul_u32_u24 v{t0}, 4682, v{t0}", f"v_lshrrev_b32 v{t0}, 16, v{t0}"]
        if i == 4: VD += [f"v_add_u32 v{t2}, 4096, v{t2}"]
        VD += [f"v_mul_u32_u24 v{t1}, 224, v{t0}", f"v_xor_b32 v{t0}, s{sJ8}, v{t0}", f"v_sub_u32 v{t1}, v{t2}, v{t1}",
               f"v_mad_u32_u24 v{vD1[i]}, v{t0}, s{sT2}, v{t1}"]
    for cc in range(448): assert (cc * 4682) >> 16 == cc // 14
    emit_all(VD[:14])
    e(f"s_add_u32 m0, s{sRB}, 7168")
    e("s_waitcnt lgkmcnt(0)"); g.smem = False
    g.stamp("args")
    def xdma(s):
        out = [] if s == 0 else [f"s_add_u32 m0, s{sRB}, {7168 + 4096*s}"]
        return out + [("vm", ("xd", s), f"buffer_load_dwordx4 v{vXD[i]}, {srd(SX)}, s{sXO[s]} offen offset:{1024*i} lds") for i in range(4)]
    emit_all(xdma(0))
    e(f"s_cmp_ge_u32 s{sW}, 2"); e(f"s_cselect_b32 s{SW1}, s42, s40"); e(f"s_cselect_b32 s{SW1+1}, s43, s41")
    e(f"s_sub_u32 s{SW1}, s{SW1}, 4096"); e(f"s_subb_u32 s{SW1+1}, s{SW1+1}, 0")
    e(f"s_mov_b32 s{SW1+2}, {1835008 + 4096}"); e(f"s_mov_b32 s{SW1+3}, 0x20000"); e(f"s_mul_i32 s{sP1[0]}, s{sXO[0]}, 1792")

    SLOT = {0: 0, 1: 1, 2: 2, 3: 3, 4: 4, 5: 0, 6: 1, 7: 2, 8: 3, 9: 0, 10: 1, 11: 4}
    def dma1(st):
        out = [f"s_add_u32 m0, s{sRB}, {7168*SLOT[st]}"]
        for i in range(7):
            if i == 4: out.append(f"s_add_u32 m0, s{sRB}, {7168*SLOT[st] + 4096}")
            out.append(("vm", ("w1", st), f"buffer_load_dwordx4 v{vD1[i]}, {srd(SW1)}, s{sP1[st]} offen offset:{(i&3)*1024} lds"))
        return out
    def dma2(st):
        q = st - 8
        out = [f"s_add_u32 m0, s{sRB}, {7168*SLOT[st]}"]
        for i in range(6):
            if i == 3: out += [f"s_add_u32 m0, s{sRB}, {7168*SLOT[st] + 3072}", f"s_add_u32 s{sP2[q]}, s{sP2[q]}, s{sDL}"]
            out.append(("vm", ("w1", st), f"buffer_load_dwordx4 v{vD2[i%3]}, {srd(SQKV)}, s{sP2[q]} offen offset:{(i%3)*1024} lds"))
        return out

    w0 = dma1(0)
    nfirst = o["w0_first"]
    while nfirst and w0:
        it = w0.pop(0); emit(it); nfirst -= is_vm(it)
    A = [f"s_lshl_b32 s{sT4}, s{sMT}, 7", f"s_sub_i32 s{sT4}, s{sT4}, 16", f"s_max_i32 s{sT4}, s{sT4}, 0",
         f"s_lshl_b32 s{sT0}, s{sW}, 2", f"s_add_u32 s{sT4}, s{sT4}, s{sT0}", f"s_lshl_b32 s{sT4}, s{sT4}, 10",
         f"v_lshrrev_b32 v{t0}, 4, v{lane}", f"v_lshlrev_b32 v{vHo}, 10, v{t0}", f"v_and_b32 v{t1}, 15, v{lane}", f"v_lshl_add_u32 v{vHo}, v{t1}, 4, v{vHo}"]
    for s in range(1, 8): A += [f"s_add_u32 s{sXO[s]}, s{sXO[s-1]}, 128", f"s_and_b32 s{sXO[s]}, s{sXO[s]}, 0x380"]
    A += [f"s_mul_i32 s{sP1[s]}, s{sXO[s]}, 1792" for s in range(1, 8)]
    A += [f"s_mov_b32 s{sMASK}, 0xffff0000", f"s_mov_b32 s{sSPIN}, 0", f"v_mov_b32 v{vONE}, 0x3f803f80"]
    A += [f"s_sub_u32 s{SQKV}, s{SQKV}, 4096", f"s_subb_u32 s{SQKV+1}, s{SQKV+1}, 0"]
    for r, n in ((SQKV, 1572864 + 4096), (SWO, 524288), (SWD, 1835008), (SOUT, 2097152), (SDBG, 256), (SWS, WS_BYTES)):
        A += [f"s_mov_b32 s{r+2}, {n}", f"s_mov_b32 s{r+3}, 0x20000"]
    A += [f"v_and_b32 v{t0}, 31, v{lane}", f"v_lshlrev_b32 v{t1}, 7, v{t0}", f"v_add_u32 v{t1}, s{sRB}, v{t1}",
          f"v_bfe_u32 v{t2}, v{lane}, 1, 3", f"v_lshrrev_b32 v{t3}, 5, v{lane}", f"v_xor_b32 v{t2}, v{t2}, v{t3}", f"v_lshl_add_u32 v{vXR[0]}, v{t2}, 4, v{t1}",
          f"s_lshl_b32 s{sT0}, s{sJ8}, 1", f"v_xor_b32 v{vXR[0]}, s{sT0}, v{vXR[0]}"]
    A += [f"v_xor_b32 v{vXR[jj]}, {32*jj}, v{vXR[0]}" for jj in (1, 2, 3)]
    halo_ld = [("vm", "halo", f"buffer_load_dwordx4 v[{vHRAW+4*i}:{vHRAW+4*i+3}], v{vHo}, {srd(SX)}, s{sT4} offen offset:{256*i}") for i in range(4)]
    B = []
    B += [f"v_lshrrev_b32 v{t0}, 5, v{lane}", f"v_bfe_u32 v{t1}, v{lane}, 2, 2", f"v_lshl_add_u32 v{t0}, v{t0}, 3, v{t1}",
          f"v_mul_u32_u24 v{t0}, 224, v{t0}", f"v_and_b32 v{t1}, 3, v{lane}", f"v_lshl_add_u32 v{t0}, v{t1}, 3, v{t0}",
          f"v_bfe_u32 v{t1}, v{lane}, 4, 1", f"v_mul_u32_u24 v{t1}, {RBc(2)}, v{t1}", f"v_add_u32 v{vT1[0]}, v{t0}, v{t1}", f"v_add_u32 v{vT1[1]}, 40960, v{vT1[0]}"]
    B += [f"v_lshrrev_b32 v{t0}, 4, v{lane}", f"s_lshl_b32 s{sT0}, s{sW}, 2", f"v_add_u32 v{t1}, s{sT0}, v{t0}", f"v_and_b32 v{t1}, 7, v{t1}",
          f"v_lshlrev_b32 v{t0}, 10, v{t0}", f"v_add_u32 v{t0}, s{sRB}, v{t0}",
          f"s_lshl_b32 s{sT0}, s{sROT}, 3", f"v_and_b32 v{t2}, 15, v{lane}", f"v_xor_b32 v{t2}, v{t2}, v{t1}", f"v_subrev_u32 v{t2}, s{sT0}, v{t2}"]
    for i in range(4):
        B += [f"v_add_u32 v{t3}, {16*i}, v{t2}", f"v_and_b32 v{t3}, 63, v{t3}", f"v_lshl_add_u32 v{vHW[i]}, v{t3}, 4, v{t0}"]
    B += [f"v_bfe_u32 v{t0}, v{lane}, 2, 2", f"v_mul_u32_u24 v{t1}, 40960, v{t0}", f"v_lshrrev_b32 v{t0}, 1, v{t0}", f"v_lshl_add_u32 v{t1}, v{t0}, 7, v{t1}",
          f"v_and_b32 v{t0}, 3, v{lane}", f"v_lshl_add_u32 v{t1}, v{t0}, 10, v{t1}",
          f"v_lshrrev_b32 v{t0}, 4, v{lane}", f"v_and_b32 v{t2}, 7, v{lane}", f"v_xor_b32 v{t0}, v{t0}, v{t2}",
          f"v_lshl_add_u32 v{vHR[0]}, v{t0}, 4, v{t1}", f"s_lshl_b32 s{sT0}, s{sJ8}, 1", f"v_xor_b32 v{vHR[0]}, s{sT0}, v{vHR[0]}", f"v_xor_b32 v{vHR[1]}, 64, v{vHR[0]}"]
    B += [f"v_lshrrev_b32 v{t0}, 3, v{lane}", f"v_lshlrev_b32 v{t0}, 10, v{t0}", f"v_bfe_u32 v{t1}, v{lane}, 4, 1", f"v_lshlrev_b32 v{t1}, 2, v{t1}",
          f"v_and_b32 v{t2}, 7, v{lane}", f"v_xor_b32 v{t1}, v{t1}, v{t2}", f"v_lshl_add_u32 v{vDW[0]}, v{t1}, 4, v{t0}"]
    B += [f"v_add_u32 v{vDW[i]}, {7168*i}, v{vDW[0]}" for i in (1, 2, 3)]
    B += [f"v_mov_b32 v{vZ+i}, 0" for i in range(4)]
    B += [f"s_lshl_b32 s{sT0}, s{sMT}, 12", f"s_lshl_b32 s{sT1}, s{sW}, 10", f"s_add_u32 s{sT0}, s{sT0}, s{sT1}", f"s_add_u32 s{sT0}, s{sT0}, {FL}",
          f"s_cmp_eq_u32 s{sSL}, 0", f"s_cselect_b32 s{sT0}, s{sT0}, {OOB}", f"v_add_u32 v{vZ+4}, s{sT0}, v{vL16}"]
    B += [f"s_cmp_ge_u32 s{sW}, 2"] + [f"s_cselect_b32 s{sP2[q]}, s{sXO[2*q+1]}, s{sXO[2*q]}" for q in range(4)]
    B += [f"s_mul_i32 s{sP2[q]}, s{sP2[q]}, 1536" for q in range(4)]
    B += [f"s_and_b32 s{sT0}, s{sJ8}, 16", f"s_mul_i32 s{sT0}, s{sT0}, 3072"] + [f"s_add_u32 s{sP2[q]}, s{sP2[q]}, s{sT0}" for q in range(4)]
    B += [f"s_lshl_b32 s{sT0}, s{sT0}, 1", f"s_sub_i32 s{sDL}, {16*3072}, s{sT0}", f"s_and_b32 s{sT0}, s{sJ8}, 8"]
    B += [f"s_and_b32 s{sT1}, s{sW}, 1", f"s_mul_i32 s{sT1}, s{sT1}, {32*3072}", f"s_lshl_b32 s{sT2}, s{sSL}, 6", f"s_add_u32 s{sT1}, s{sT1}, s{sT2}", f"s_add_u32 s{sT1}, s{sT1}, 4096"]
    for i in range(3):
        B += [f"v_add_u32 v{t0}, {64*i}, v{lane}", f"v_mul_u32_u24 v{t1}, 5462, v{t0}", f"v_lshrrev_b32 v{t1}, 16, v{t1}",
              f"v_mul_u32_u24 v{t2}, 12, v{t1}", f"v_sub_u32 v{t0}, v{t0}, v{t2}",
              f"v_xor_b32 v{t1}, s{sT0}, v{t1}", f"v_mul_u32_u24 v{t2}, 3072, v{t1}", f"v_lshrrev_b32 v{t1}, 2, v{t0}", f"v_lshl_add_u32 v{t2}, v{t1}, 10, v{t2}",
              f"v_and_b32 v{t0}, 3, v{t0}", f"v_lshl_add_u32 v{t2}, v{t0}, 4, v{t2}", f"v_add_u32 v{vD2[i]}, s{sT1}, v{t2}"]
        if i: B.append(f"v_subrev_u32 v{vD2[i]}, {1024*i}, v{vD2[i]}")
    for cc in range(192): assert (cc * 5462) >> 16 == cc // 12
    B += [f"v_bfe_u32 v{t1}, v{lane}, 2, 2", f"v_and_b32 v{t3}, 3, v{lane}", f"v_lshrrev_b32 v{t0}, 5, v{lane}", f"v_lshl_add_u32 v{t0}, v{t0}, 3, v{t1}",
          f"v_mul_u32_u24 v{t0}, 192, v{t0}", f"v_lshl_add_u32 v{t0}, v{t3}, 3, v{t0}",
          f"v_bfe_u32 v{t2}, v{lane}, 4, 1", f"v_lshl_add_u32 v{vT2[0]}, v{t2}, 5, v{t0}"]
    B += [f"v_add_u32 v{vT2[r]}, {RBc(r)}, v{vT2[0]}" for r in (1, 2, 3)]
    B += [f"v_lshrrev_b32 v{t0}, 4, v{lane}", f"v_lshl_add_u32 v{t0}, v{t0}, 3, v{t1}", f"v_mul_u32_u24 v{t0}, 192, v{t0}", f"v_lshl_add_u32 v{t0}, v{t3}, 3, v{t0}",
          f"s_lshl_b32 s{sT1}, s{sW}, 5", f"s_add_u32 s{sT1}, s{sT1}, 64", f"v_add_u32 v{vTH[0]}, s{sT1}, v{t0}"]
    B += [f"v_add_u32 v{vTH[r]}, {RBc(r)}, v{vTH[0]}" for r in (1, 2, 3)]
    B += [f"v_lshrrev_b32 v{t0}, 5, v{lane}", f"v_lshl_add_u32 v{t0}, v{t0}, 2, v{t1}", f"v_lshlrev_b32 v{t0}, 7, v{t0}",
          f"v_add_u32 v{t0}, s{sRB}, v{t0}", f"v_lshl_add_u32 v{t0}, v{t3}, 3, v{t0}", f"v_lshl_add_u32 v{t0}, v{t2}, 5, v{t0}",
          f"v_bfe_u32 v{t1}, v{lane}, 3, 1", f"s_and_b32 s{sT1}, s{sW}, 1", f"v_xor_b32 v{t1}, s{sT1}, v{t1}", f"v_lshl_add_u32 v{vTW[0]}, v{t1}, 6, v{t0}",
          f"v_xor_b32 v{vTW[1]}, 64, v{vTW[0]}"]
    B += [f"s_lshl_b32 s{sT0}, s{sMT}, 1", f"s_lshr_b32 s{sT1}, s{sW}, 1", f"s_add_u32 s{sT0}, s{sT0}, s{sT1}", f"s_lshl_b32 s{sT0}, s{sT0}, 11",
          f"s_lshl_b32 s{sT1}, s{sSL}, 3", f"s_add_u32 s{sT0}, s{sT0}, s{sT1}", f"s_and_b32 s{sT1}, s{sW}, 1", f"s_lshl_b32 s{sT1}, s{sT1}, 2",
          f"s_add_u32 s{sT0}, s{sT0}, s{sT1}", f"s_add_u32 s{sT0}, s{sT0}, {FL}",
          f"v_lshlrev_b32 v{vFl}, 8, v{lane}", f"v_add_u32 v{vFl}, s{sT0}, v{vFl}", f"v_cmp_gt_u32 vcc, 8, v{lane}", f"v_mov_b32 v{t0}, {OOB}",
          f"s_lshl_b32 s{sT0}, s{sM2}, 3", f"v_cndmask_b32 v{vFl}, v{t0}, v{vFl}, vcc",
          f"s_add_u32 s{sT0}, s{sT0}, s{sNT}", f"s_lshl_b32 s{sT0}, s{sT0}, 8", f"s_lshl_b32 s{sT1}, s{sW}, 5",
          f"s_add_u32 s{sT0}, s{sT0}, s{sT1}", f"s_add_u32 s{sT0}, s{sT0}, {FL}",
          f"v_and_b32 v{vPo}, 7, v{lane}", f"v_lshlrev_b32 v{vPo}, 2, v{vPo}", f"v_add_u32 v{vPo}, s{sT0}, v{vPo}",
          f"s_lshl_b32 s{sT5}, s{sMT}, 2"] + ([f"s_add_u32 s{sT5}, s{sT5}, 64"] if o.get("dbgrep") else []) + [
          f"s_or_b32 s{sT1}, s{sSL}, s{sW}", f"s_cmp_eq_u32 s{sT1}, 0", f"s_cselect_b32 s{sT0}, s{sT5}, 0x1000",
          f"v_lshlrev_b32 v{vSg}, 12, v{lane}", f"v_add_u32 v{vSg}, s{sT0}, v{vSg}", f"v_mov_b32 v{vCK}, 1"]
    B += [f"s_lshl_b32 s{sT0}, s{sM2}, 3", f"s_add_u32 s{sT0}, s{sT0}, s{sNT}", f"s_lshl_b32 s{sT0}, s{sT0}, 2", f"s_add_u32 s{sT0}, s{sT0}, s{sW}", f"s_lshl_b32 s{sT0}, s{sT0}, 9",
          f"v_lshlrev_b32 v{vTouch}, 7, v{lane}", f"v_add_u32 v{vTouch}, s{sT0}, v{vTouch}", f"v_cmp_gt_u32 vcc, 4, v{lane}", f"v_mov_b32 v{t0}, {OOB}", "s_nop 0",
          f"v_cndmask_b32 v{vTouch}, v{t0}, v{vTouch}, vcc"]
    B += [f"s_lshl_b32 s{sT0}, s{sM2}, 1", f"s_lshr_b32 s{sT1}, s{sW}, 1", f"s_add_u32 s{sT2}, s{sT0}, s{sT1}", f"s_xor_b32 s{sT3}, s{sT2}, 1",
          f"s_mul_i32 s{sT2}, s{sT2}, {144*1024}", f"s_mul_i32 s{sT3}, s{sT3}, {144*1024}",
          f"s_mul_i32 s{sT0}, s{sW}, {28*1024}", f"s_add_u32 s{sT0}, s{sT0}, {32*1024}", f"s_add_u32 s{sH0}, s{sT2}, s{sT0}", f"s_add_u32 s{sH1}, s{sT3}, s{sT0}",
          f"s_lshl_b32 s{sT0}, s{sW}, 13", f"s_add_u32 s{sO0}, s{sT2}, s{sT0}", f"s_add_u32 s{sO1}, s{sT3}, s{sT0}"]
    B += [f"s_lshl_b32 s{sTb}, s{sMT}, 2", f"s_add_u32 s{sTb}, s{sTb}, s{sW}", f"s_mul_i32 s{sTb}, s{sTb}, {144*1024}",
          f"s_mul_i32 s{sT0}, s{sSL}, 7168", f"s_add_u32 s{sHST}, s{sTb}, s{sT0}", f"s_add_u32 s{sHST}, s{sHST}, {32*1024}",
          f"s_lshl_b32 s{sT0}, s{sNT}, 7", f"s_mul_i32 s{sW2D}, s{sW}, {448*1024}", f"s_add_u32 s{sW2D}, s{sW2D}, s{sT0}",
          f"s_lshl_b32 s{sW2O}, s{sW}, 17", f"s_add_u32 s{sW2O}, s{sW2O}, s{sT0}"]
    if o["rot2"]:
        B += [f"s_and_b32 s{sT0}, s{sM2}, 3", f"s_lshl_b32 s{sT0}, s{sT0}, 1", f"s_lshr_b32 s{sT1}, s{sM2}, 2", f"s_add_u32 s{sT0}, s{sT0}, s{sT1}"]
        if o["rot2"] == 1: B += [f"s_add_u32 s{sT0}, s{sT0}, s{sNT}"]
        if o["rot2"] == 3: B += [f"s_and_b32 s{sT1}, s{sNT}, 1", f"s_mul_i32 s{sT1}, s{sT1}, 3", f"s_add_u32 s{sT0}, s{sT0}, s{sT1}"]
        if o["rot2"] == 4: B += [f"s_and_b32 s{sT1}, s{sNT}, 1", f"s_add_u32 s{sT0}, s{sT0}, s{sT1}"]
        B += [f"s_mul_i32 s{sT1}, s{sT0}, 37", f"s_lshr_b32 s{sT1}, s{sT1}, 8", f"s_mul_i32 s{sT1}, s{sT1}, 7", f"s_sub_u32 s{sT0}, s{sT0}, s{sT1}", f"s_lshl_b32 s{sGK[0]}, s{sT0}, 12"]
        for x in range(21): assert (x * 37) >> 8 == x // 7
    else:
        B += [f"s_mov_b32 s{sGK[0]}, 0"]
    for j in range(1, 7):
        B += [f"s_add_u32 s{sGK[j]}, s{sGK[j-1]}, 4096", f"s_cmp_eq_u32 s{sGK[j]}, {7*4096}", f"s_cselect_b32 s{sGK[j]}, 0, s{sGK[j]}"]

    def ln_scalars(vs, vq, r, c, ta, tb):
        return [f"v_mul_f32 v{vs}, 0x3b000000, v{vs}", f"v_mul_f32 v{vq}, 0x3b000000, v{vq}", f"v_fma_f32 v{vq}, -v{vs}, v{vs}, v{vq}",
                f"v_max_f32 v{vq}, 0, v{vq}", f"v_cvt_pk_bf16_f32 v{ta}, v{vs}, v{vq}", f"v_and_b32 v{tb}, s{sMASK}, v{ta}",
                f"v_add_f32 v{tb}, 0x3727c5ac, v{tb}", f"v_cvt_pk_bf16_f32 v{tb}, v{tb}, v{tb}", f"v_and_b32 v{tb}, s{sMASK}, v{tb}",
                f"v_sqrt_f32 v{tb}, v{tb}", f"v_lshlrev_b32 v{ta}, 16, v{ta}", f"v_cvt_pk_bf16_f32 v{tb}, v{tb}, v{tb}", f"v_and_b32 v{tb}, s{sMASK}, v{tb}",
                f"v_rcp_f32 v{r}, v{tb}", "s_nop 0", f"v_mul_f32_e64 v{c}, -v{ta}, v{r}"]
    def norm_dword(d, r, c, ta, tb):
        return [f"v_lshlrev_b32 v{ta}, 16, v{d}", f"v_and_b32 v{tb}, s{sMASK}, v{d}", f"v_fma_f32 v{ta}, v{ta}, v{r}, v{c}",
                f"v_fma_f32 v{tb}, v{tb}, v{r}, v{c}", f"v_cvt_pk_bf16_f32 v{d}, v{ta}, v{tb}"]
    H = [W(vm="halo")]
    for i in range(16):
        d = vHRAW + i
        H += [f"v_dot2_f32_bf16 v{hS[i&1]}, v{d}, v{vONE}, {'0' if i < 2 else 'v%d' % hS[i&1]}",
              f"v_dot2_f32_bf16 v{hQ[i&1]}, v{d}, v{d}, {'0' if i < 2 else 'v%d' % hQ[i&1]}"]
    H += ["s_nop 2", f"v_add_f32 v{hS[0]}, v{hS[0]}, v{hS[1]}", f"v_add_f32 v{hQ[0]}, v{hQ[0]}, v{hQ[1]}"]
    for sh in (8, 4, 2, 1):
        H += ["s_nop 0", f"v_add_f32_dpp v{hS[0]}, v{hS[0]}, v{hS[0]} row_ror:{sh} row_mask:0xf bank_mask:0xf",
              f"v_add_f32_dpp v{hQ[0]}, v{hQ[0]}, v{hQ[0]} row_ror:{sh} row_mask:0xf bank_mask:0xf"]
    H = [x for x in H]
    H += ln_scalars(hS[0], hQ[0], hr, hc, t0, t1)
    for i in range(16):
        d = vHRAW + i; ta = t0 + 2 * (i & 1)
        H += [f"v_lshlrev_b32 v{ta}, 16, v{d}", f"v_and_b32 v{ta+1}, s{sMASK}, v{d}",
              f"v_pk_fma_f32 v[{ta}:{ta+1}], v[{ta}:{ta+1}], v[{hr}:{hc}], v[{hr}:{hc}] op_sel:[0,0,1] op_sel_hi:[1,0,1]",
              f"v_cvt_pk_bf16_f32 v{d}, v{ta}, v{ta+1}"]
    def xread(s):
        return [W(vm=("xd", s))] + [("lg", ("xr", 4 * s + jj), f"ds_read_b128 v[{xn(4*s+jj)}:{xn(4*s+jj)+3}], v{vXR[jj]} offset:{7168 + 4096*s}") for jj in range(4)]
    def xstats(s):
        out = []
        for jj in range(4):
            k = 4 * s + jj
            out.append(W(lg=("xr", k)))
            for i in range(4):
                d = xn(k) + i; z = (k == 0 and i < 2)
                out += [f"v_dot2_f32_bf16 v{vS[i&1]}, v{d}, v{vONE}, {'0' if z else 'v%d' % vS[i&1]}",
                        f"v_dot2_f32_bf16 v{vQ[i&1]}, v{d}, v{d}, {'0' if z else 'v%d' % vQ[i&1]}"]
            if k in pureg:
                out += [f"v_lshlrev_b32 v{pureg[k]+i}, 16, v{xn(k)+i}" for i in range(4)]
                out += [f"v_and_b32 v{xn(k)+i}, s{sMASK}, v{xn(k)+i}" for i in range(4)]
        return out
    emit_all(A[:10] + halo_ld)
    g.stamp("dma0")
    emit_all(VD[14:] + A[10:])
    g.stamp("A")
    emit_all(B)
    g.stamp("B")
    assert not (w0 and is_vm(w0[0]) and False)
    w0 = [f"s_add_u32 m0, s{sRB}, 0"] + w0
    clr = [("vm", "clr", f"buffer_store_dwordx4 v[{vZ}:{vZ+3}], v{vZ+4}, {srd(SWS)}, 0 offen sc1")]
    mem = xdma(1) + xdma(2) + xdma(3) + xdma(4) + xdma(5)
    if o["w0_pos"] == 5: mem += w0 + xdma(6) + xdma(7)
    elif o["w0_pos"] == 6: mem += xdma(6) + w0 + xdma(7)
    else: mem += xdma(6) + xdma(7) + w0
    mem += clr
    nb = o["burst"]
    while nb:
        it = mem.pop(0); emit(it); nb -= is_vm(it)
    g.stamp("Bx")
    work = list(H) + xread(0)
    def must(key): return ("fn", lambda: [emit(mem.pop(0)) for _ in range(max([n_ + 1 for n_, it in enumerate(mem) if is_vm(it) and it[1] == key] + [0]))])
    for s in range(8):
        if s + 1 < 8: work += [must(("xd", s + 1))] + xread(s + 1)
        if s == 7:
            work.append(W(lg=("xr", 31)))
            work += [("lg", "hw", f"ds_write_b128 v{vHW[i]}, v[{vHRAW+4*i}:{vHRAW+4*i+3}] offset:35840") for i in range(4)]
        work += xstats(s)
        if s == 1: work.append(("fn", lambda: mem.extend(dma1(1))))
        work.append(("fn", lambda s=s: g.stamp(f"st{s}")))
    weave(work, mem, o["s_ratio"])
    while any(is_vm(m) and m[1] in ("clr", ("w1", 0)) for m in mem): emit(mem.pop(0))
    mem += dma1(2) + dma1(3) + dma1(4)
    g.stamp("x_done")
    e("s_nop 1")
    e(f"v_add_f32 v{vS[0]}, v{vS[0]}, v{vS[1]}"); e(f"v_add_f32 v{vQ[0]}, v{vQ[0]}, v{vQ[1]}")
    e(f"v_mov_b32 v{vS[1]}, v{vS[0]}"); e(f"v_mov_b32 v{vQ[1]}, v{vQ[0]}")
    g.wait(vm=max(ids["clr"], ids[("w1", 0)]), lg=ids["hw"])
    e("s_barrier")
    e(f"v_permlane32_swap_b32 v{vS[0]}, v{vS[1]}"); e(f"v_permlane32_swap_b32 v{vQ[0]}, v{vQ[1]}")

    frags = []
    for m in range(224):
        st, jj, b = m // 28, (m % 28) // 7, m % 7
        base = 7168 * SLOT[st] + (16 * (jj & 1)) * 224 + b * 32
        frags.append(dict(st=st, addr=vT1[jj >> 1], o0=base, o1=base + 4 * 224, kind="p1", k=4 * st + jj, b=b))
    for q in range(4):
        st = 8 + q
        for jj in range(8):
            for b in range(3):
                base = 7168 * SLOT[st] + (16 * (jj & 1)) * 192 + b * 64
                frags.append(dict(st=st, addr=vT2[jj >> 1], o0=base, o1=base + 4 * 192, kind="p2", k=8 * q + jj, b=b))
            if jj & 1:
                base = 7168 * SLOT[st]
                frags.append(dict(st=st, addr=vTH[jj >> 1], o0=base, o1=base + 4 * 192, kind="h", k=4 * q + (jj >> 1), b=0))
    NF = len(frags)
    frd = {}
    hiq = []; loq = []; ldsq = []
    memq = list(mem)
    cur = [0]; done = set(); lastvm = [-9]
    def add_hi(items, deadline):
        n = len(items); t_ = cur[0]
        new = [(t_ + (deadline - t_) * (j + 1) // n, it) for j, it in enumerate(items)]
        merged = []; a = b = 0
        while a < len(hiq) or b < len(new):
            if b >= len(new) or (a < len(hiq) and hiq[a][0] <= new[b][0]): merged.append(hiq[a]); a += 1
            else: merged.append(new[b]); b += 1
        hiq[:] = merged
    UA = [35840, 37888]; UC = [28672, 30720, 32768]; U0 = [0, 2048, 4096]; US = [14336, 16384, 18432]; U1 = [6144 + 2048 * i for i in range(4)]
    unit = {}
    for lst, us in (([0, 1], UA), ([2, 3], UA), ([4, 5, 6], UC), ([7, 8], UA), ([9, 10, 11], US), ([12, 13], UA), ([14, 15, 16], US), ([17, 18, 19], U0),
                    (range(20, 27), U1 + UC), (range(27, 35), UA + US + U0), ([35], U1)):
        for j, ks in enumerate(lst): unit[ks] = us[j]
    def w2reg(ks): return (160 + 8 * ks) if ks < 12 else (96 + 8 * (ks - 12))
    def w2dma(ks_list):
        out = []; i = 0
        while i < len(ks_list):
            ks = ks_list[i]; u = unit[ks]
            pair = (i + 1 < len(ks_list) and ks_list[i+1] == ks + 1 and unit[ks+1] == u + 2048 and (ks & 3) != 3)
            out.append(f"s_add_u32 m0, s{sRB}, {u}")
            if ks < 28:
                sr = SWD
                out += [f"s_lshl_b32 s{sT4}, s{sGK[ks>>2]}, 4", f"s_add_u32 s{sT4}, s{sT4}, s{sW2D}"]
                if ks & 3: out.append(f"s_add_u32 s{sT4}, s{sT4}, {(ks&3)*16384}")
            else:
                sr = SWO
                out.append(f"s_add_u32 s{sT4}, s{sW2O}, {(ks-28)*16384}")
            for j in range(4 if pair else 2):
                out.append(("vm", ("w2", ks + (j >> 1)), f"buffer_load_dwordx4 v{vDW[j]}, {srd(sr)}, s{sT4} offen offset:{1024*j} lds"))
            i += 2 if pair else 1
        return out
    def need(key):
        def f():
            while any(is_vm(it) and it[1] == key for it in memq): emit(memq.pop(0))
            g.wait(vm=ids[key])
        return ("fn", lambda: f())
    def w2toreg(ks):
        out = [need(("w2", ks))]
        for nb in range(2):
            r = w2reg(ks) + 4 * nb
            for sec in range(2):
                out.append(("lg", ("w2r", ks), f"ds_read_b64_tr_b16 a[{r+2*sec}:{r+2*sec+1}], v{vTW[nb]} offset:{unit[ks] + 1024*sec}"))
        return out
    def stage_w2(rd_list, next_list):
        for ks in rd_list: ldsq.extend(w2toreg(ks))
        def refill():
            memq.append(W(lg=("w2r", rd_list[-1]))); memq.extend(w2dma(next_list))
        ldsq.append(("fn", refill))
    def on_barrier(s):
        nxt = {1: 5, 2: 6, 3: 7, 4: 8, 6: 9, 7: 10}.get(s)
        if nxt is not None: push_front(memq, dma1(nxt) if nxt < 8 else dma2(nxt), after_w1=True)
        if s == 0:
            for j in range(16):
                ldsq.append(("lg", ("hx", j), f"ds_read_b128 a[{HX+4*j}:{HX+4*j+3}], v{vHR[j&1]} offset:{35840 + 128*(j>>1)}"))
            ldsq.append(("fn", lambda: done.add("hx")))
        if s == 2:
            assert "hx" in done and g.lg_done > ids[("hx", 15)]
            memq.extend(w2dma([0, 1]))
            memq.append(("vm", "dbgchk", f"buffer_load_dword v{vCK}, off, {srd(SDBG)}, s{sT5} sc1"))
        if s == 4: stage_w2([0, 1], [2, 3])
        if s == 5:
            memq.extend(w2dma([4, 5, 6]))
            def chk():
                g.wait(vm=ids["dbgchk"])
                e(f"v_readfirstlane_b32 s{sT0}, v{vCK}")
                e(f"s_cmp_lg_u32 s{sT0}, 0")
                e("s_cbranch_scc0 L_dbgspin")
                g.label("L_dbgok")
            add_hi([("fn", chk)], 28 * 7)
        if s == 6: stage_w2([2, 3], [7, 8])
        if s == 7:
            for ks in (4, 5, 6): ldsq.extend(w2toreg(ks))
            def refill():
                push_front(memq, [W(lg=("w2r", 6))] + dma2(11), after_w1=True); done.add("q11")
            ldsq.append(("fn", refill))
        if s == 8:
            memq.extend(w2dma([9, 10, 11]))
            stage_w2([7, 8], [12, 13])
        if s == 10:
            memq.extend(w2dma([17, 18, 19]))
            stage_w2([9, 10, 11], [14, 15, 16])
    def issue_frag(i):
        f = frags[i]; n = 0
        if i > 0 and frags[i - 1]["st"] != f["st"]:
            assert not any(is_vm(it) and it[1] == ("w1", f["st"]) for it in memq), f["st"]
            g.stamp(f"preB{f['st']-1}")
            n += g.wait(vm=ids[("w1", f["st"])]); e("s_barrier"); n += 1
            g.stamp(f"B{f['st']-1}")
            on_barrier(f["st"] - 1)
        r = FR + 4 * (i % 8)
        g.lg(f"ds_read_b64_tr_b16 a[{r}:{r+1}], v{f['addr']} offset:{f['o0']}")
        frd[i] = g.lg(f"ds_read_b64_tr_b16 a[{r+2}:{r+3}], v{f['addr']} offset:{f['o1']}")
        return n + 2
    def ln_items(k):
        out = []
        if k in pureg:
            for i in range(4):
                lo, d = pureg[k] + i, xn(k) + i
                out += [f"v_fma_f32 v{lo}, v{lo}, v{vR}, v{vC}", f"v_fma_f32 v{d}, v{d}, v{vR}, v{vC}"]
            out += [f"v_cvt_pk_bf16_f32 v{xn(k)+i}, v{pureg[k]+i}, v{xn(k)+i}" for i in range(4)]
        else:
            for i in range(4): out += norm_dword(xn(k) + i, vR, vC, vTmp[2 * (i & 1)], vTmp[2 * (i & 1) + 1])
        return out
    for i in range(D): issue_frag(i)
    e(f"v_add_f32 v{vS[0]}, v{vS[0]}, v{vS[1]}"); e(f"v_add_f32 v{vQ[0]}, v{vQ[0]}, v{vQ[1]}")
    emit_all(ln_scalars(vS[0], vQ[0], vR, vC, t0, t1))
    emit_all(ln_items(0))
    if o["touch"]:
        memq.append(("vm", "touch", f"buffer_load_dword v{vTouch}, v{vTouch}, {srd(SWO)}, 0 offen"))
    memq.append(("vm", "sig", f"buffer_store_dword v{vCK}, v{vSg}, {srd(SDBG)}, 0 offen sc1"))
    e("s_nop 0")
    g.stamp("mfma_start")
    for k in range(1, 32):
        its_ = ln_items(k)
        for j_, x in enumerate(its_): hiq.append((7 * (k - 1) + (6 * (j_ + 1) - 1) // len(its_), x))

    stq = []
    def epi_items(b):
        t, r = acc1(b); out = []
        P = r + 8
        if t == "a":
            base = ACCV + 16 * ((b - 3) % 3)
            ut = base + 12 if b < 6 else ACCV + 16
            out += [f"v_accvgpr_read_b32 v{base+i}, a{r+i}" for i in range(8)]
            out += [f"v_max_f32 v{base+i}, 0, v{base+i}" for i in range(8)]
            for hh in range(2):
                out += [f"v_accvgpr_read_b32 v{ut+i}, a{r+8+4*hh+i}" for i in range(4)]
                out += [f"v_mul_f32 v{base+4*hh+i}, v{base+4*hh+i}, v{ut+i}" for i in range(4)]
            P = base + 12 if b < 6 else base
            r = base
        else:
            out += [f"v_max_f32 v{r+i}, 0, v{r+i}" for i in range(8)]
            out += [f"v_mul_f32 v{r+i}, v{r+i}, v{r+8+i}" for i in range(8)]
        out += [f"v_cvt_pk_bf16_f32 v{P+i}, v{r+2*i}, v{r+2*i+1}" for i in range(4)]
        st = ([f"s_add_u32 s{sHST}, s{sHST}, 4096"] if b == 4 else []) + \
             [("vm", ("hst", b), f"buffer_store_dwordx4 v[{P}:{P+3}], v{vL16}, {srd(SWS)}, s{sHST} offen offset:{(b&3)*1024} sc1")]
        out.append(("fn", lambda: stq.extend(st)))
        return out
    def chkdone(key): assert key in ids, key
    flag_items = [f"v_mov_b32 v{vR}, 1"]
    vOne = vR
    def hflag():
        g.wait(vm=ids[("hst", 6)])
        g.vm(f"buffer_store_dword v{vOne}, v{vFl}, {srd(SWS)}, 0 offen sc1")
        g.stamp("hflag"); done.add("hflag")
    QA = PUB
    for i in range(NF):
        f = frags[i]
        used = 2; cur[0] = i
        if i % WB == 0: used += g.wait(lg=frd[min(i + WB - 1, NF - 1)])
        else: used += g.wait(lg=frd[i])
        fr = f"a[{FR + 4*(i%8)}:{FR + 4*(i%8) + 3}]"
        if f["kind"] == "p1":
            t, r = acc1(f["b"]); dst = rr(t, r, 16)
            e(f"v_mfma_f32_32x32x16_bf16 {dst}, {fr}, v[{xn(f['k'])}:{xn(f['k'])+3}], {dst if f['k'] else '0'}")
            cap = 8
        elif f["kind"] == "p2":
            dst = rr("v", QA + 16 * f["b"], 16)
            e(f"v_mfma_f32_32x32x16_bf16 {dst}, {fr}, v[{xn(f['k'])}:{xn(f['k'])+3}], {dst if f['k'] else '0'}")
            cap = 8
        else:
            dst = rr("v", vHA, 4)
            e(f"v_mfma_f32_16x16x32_bf16 {dst}, {fr}, a[{HX+4*f['k']}:{HX+4*f['k']+3}], {dst if f['k'] else '0'}")
            cap = 4
        if i + D < NF: used += issue_frag(i + D)
        if i == 224 + 2:
            for b in range(7): loq.extend(epi_items(b))
            loq.extend(flag_items)
        if i == 223: g.stamp("pass1_end")
        if ("hst", 6) in ids and "hst_gap" not in ids: ids["hst_gap"] = i; g.stamp("hst")
        if "hst_gap" in ids and "hflag" not in done and not loq and i >= ids["hst_gap"] + o["hflag_delay"]: hflag(); used += 2
        if stq and not any(is_vm(it) and it[1] in (("w1", 10), ("w1", 11))[:2 - o["st_early"]] for it in memq) and ("q11" in done or o["st_early"]):
            j_ = max([n_ + 1 for n_, it in enumerate(memq) if is_vm(it) and it[1][0] == "hst"] + [0])
            memq[j_:j_] = stq; stq[:] = []
        epi_first = (i >= 224 and (loq or stq))
        if ldsq and used < cap and (not epi_first or "q11" not in done):
            while ldsq and ldsq[0][0] == "fn": emit(ldsq.pop(0))
            if ldsq and (g.lg_n - g.lg_done) < 15:
                emit(ldsq.pop(0)); used += 1
            while ldsq and ldsq[0][0] == "fn" and ldsq[0][1].__name__ != "<lambda>": emit(ldsq.pop(0))
        late = sum(1 for d_, _ in hiq[:8] if d_ <= i)
        urgent = any(is_vm(it) and it[1][0] in ("w1", "hst") for it in memq)
        while memq and used + late < cap and (urgent or not epi_first):
            it = memq[0]
            if is_vm(it):
                if used + late + o["dmacost"] > cap + 1 or i < lastvm[0] + (o["dma_gap"] if i < 217 else o["dma_gap2"]): break
                memq.pop(0); emit(it); used += o["dmacost"]; lastvm[0] = i; break
            memq.pop(0); n0 = len(g.L); emit(it); used += len(g.L) - n0
        while hiq and (used < cap or hiq[0][0] <= i):
            it = hiq.pop(0)[1]; n0 = len(g.L); emit(it); used += len(g.L) - n0
        while loq and used < cap + (o["epi_over"] if cap == 8 else 0):
            it = loq.pop(0); n0 = len(g.L); emit(it); used += len(g.L) - n0
    assert not hiq
    emit_all(loq); loq[:] = []
    assert not stq
    while ldsq: emit(ldsq.pop(0))
    g.stamp("pass2_end")

    Q, K, V = QA, QA + 16, QA + 32
    KVO = 21504
    a0, a1, a2, a3 = 1, 2, 3, 4
    vKW, vVW, vVW2, vKR, vVR, vVR2, vHWa = 5, 6, 7, 8, 9, 11, 17
    vXo = 16; vPd = 22; vRD = 24
    sXR = sXO[0]
    P = []
    P += [f"v_and_b32 v{a0}, 31, v{lane}", f"v_lshrrev_b32 v{a1}, 5, v{lane}",
          f"s_lshl_b32 s{sT0}, s{sW}, 5", f"v_add_u32 v{a2}, s{sT0}, v{a0}", f"v_lshlrev_b32 v{a2}, 4, v{a2}",
          f"v_mul_u32_u24 v{a3}, 40960, v{a1}", f"v_add_u32 v{a3}, v{a3}, v{a2}", f"v_add_u32 v{vVW}, {KVO + 256}, v{a3}", f"v_add_u32 v{vVW2}, {RBc(2)}, v{vVW}",
          f"v_mul_u32_u24 v{a3}, {RBc(2)}, v{a1}", f"v_add_u32 v{a3}, v{a3}, v{a2}", f"v_add_u32 v{vKW}, {KVO + 4608 + 256}, v{a3}", f"v_add_u32 v{vKR}, {KVO + 4608 + 32}, v{a3}",
          f"v_mul_u32_u24 v{a3}, 2304, v{a1}", f"v_add_u32 v{a3}, v{a3}, v{a2}", f"v_add_u32 v{vVR}, {KVO + 32}, v{a3}", f"v_add_u32 v{vVR2}, {RBc(2)}, v{vVR}"]
    P += [f"v_cvt_pk_bf16_f32 v{K+j}, v{K+2*j}, v{K+2*j+1}" for j in range(8)]
    for j, (rg, off) in enumerate([(vVW, 0), (vVW2, 0), (vVW, 2304), (vVW2, 2304)]):
        P.append(("lg", "vw", f"ds_write_b128 v{rg}, v[{V+4*j}:{V+4*j+3}] offset:{off}"))
    P += [f"v_permlane32_swap_b32 v{K+j}, v{K+4+j}" for j in range(4)]
    P += [f"v_and_b32 v{a0}, 15, v{lane}", f"v_lshlrev_b32 v{a0}, 4, v{a0}", f"v_lshrrev_b32 v{a1}, 4, v{lane}"]
    P += [("lg", "kw", f"ds_write_b128 v{vKW}, v[{K}:{K+3}]"), ("lg", "kw", f"ds_write_b128 v{vKW}, v[{K+4}:{K+7}] offset:40960")]
    weave(P, memq, o["att_ratio"])
    g.wait(lg=g.lg_n - 8)
    e(f"s_cmp_ge_u32 s{sW}, 2"); e("s_cbranch_scc1 L_halo_v")
    e(f"v_and_b32 v{a2}, 1, v{a1}"); e(f"v_mul_u32_u24 v{a2}, 40960, v{a2}"); e(f"v_lshrrev_b32 v{a1}, 1, v{a1}"); e(f"v_lshl_add_u32 v{a2}, v{a1}, 3, v{a2}")
    e(f"s_mul_i32 s{sT0}, s{sW}, {RBc(2)}"); e(f"v_add3_u32 v{vHWa}, v{a2}, v{a0}, s{sT0}")
    e(f"v_cvt_pk_bf16_f32 v{vHA}, v{vHA}, v{vHA+1}"); e(f"v_cvt_pk_bf16_f32 v{vHA+1}, v{vHA+2}, v{vHA+3}")
    e(f"ds_write_b64 v{vHWa}, v[{vHA}:{vHA+1}] offset:{KVO + 4608}")
    e("s_branch L_halo_done")
    g.label("L_halo_v")
    e(f"v_mul_u32_u24 v{a2}, 40960, v{a1}"); e(f"v_lshrrev_b32 v{a1}, 1, v{a1}"); e(f"v_lshl_add_u32 v{a2}, v{a1}, 7, v{a2}")
    e(f"s_and_b32 s{sT0}, s{sW}, 1"); e(f"s_mul_i32 s{sT0}, s{sT0}, 2304"); e(f"v_add3_u32 v{vHWa}, v{a2}, v{a0}, s{sT0}")
    g.lg(f"ds_write_b128 v{vHWa}, v[{vHA}:{vHA+3}] offset:{KVO}")
    g.label("L_halo_done")
    P = [f"v_cvt_pk_bf16_f32 v{Q+j}, v{Q+2*j}, v{Q+2*j+1}" for j in range(8)]
    P += ["s_nop 0"]
    P += [f"v_permlane32_swap_b32 v{Q+j}, v{Q+4+j}" for j in range(4)]
    weave(P, memq, o["att_ratio"])
    if "hflag" not in done:
        while any(is_vm(it) and it[1][0] == "hst" for it in memq): emit(memq.pop(0))
        hflag()
    g.wait_all_lg()
    e("s_barrier")
    g.stamp("attn_bar")
    KB = 128; VB = 192
    AT = []
    for w in range(8):
        for p in range(2):
            AT.append(("lg", ("kr", w), f"ds_read_b128 v[{KB+8*w+4*p}:{KB+8*w+4*p+3}], v{vKR} offset:{(14-2*w)*16 + 40960*p}"))
    AT += [f"s_lshl_b32 s{sXR}, s{sM2}, 16", f"s_lshr_b32 s{sT0}, s{sW}, 1", f"s_lshl_b32 s{sT0}, s{sT0}, 15", f"s_add_u32 s{sXR}, s{sXR}, s{sT0}",
           f"s_lshl_b32 s{sT0}, s{sNT}, 7", f"s_add_u32 s{sXR}, s{sXR}, s{sT0}", f"s_and_b32 s{sT0}, s{sW}, 1", f"s_lshl_b32 s{sT0}, s{sT0}, 6", f"s_add_u32 s{sXR}, s{sXR}, s{sT0}"]
    AT += [f"v_lshrrev_b32 v{a0}, 2, v{lane}", f"v_lshlrev_b32 v{a0}, 10, v{a0}", f"v_lshrrev_b32 v{a1}, 4, v{lane}", f"v_xor_b32 v{a1}, v{a1}, v{lane}",
           f"v_and_b32 v{a1}, 3, v{a1}", f"v_lshl_add_u32 v{vRD}, v{a1}, 4, v{a0}"]
    RU = [20480, 34816]
    resid = [f"s_add_u32 m0, s{sRB}, {RU[0]}", ("vm", "res", f"buffer_load_dwordx4 v{vRD}, {srd(SX)}, s{sXR} offen lds"),
             f"s_add_u32 m0, s{sRB}, {RU[1]}", f"s_add_u32 s{sT4}, s{sXR}, 16384", ("vm", "res", f"buffer_load_dwordx4 v{vRD}, {srd(SX)}, s{sT4} offen lds")]
    hpoll = [("vm", "hp", f"buffer_load_dword v{vPd}, v{vPo}, {srd(SWS)}, 0 offen sc1")]
    LG = 32
    def vread(w):
        return [("lg", ("vr", w), f"ds_read_b128 v[{VB+16*(w&3)+4*dq}:{VB+16*(w&3)+4*dq+3}], v{vVR if dq < 2 else vVR2} offset:{(14-2*w)*16 + 40960*(dq&1)}") for dq in range(4)]
    QK = []
    for w2 in range(0, 8, 2):
        QK.append(W(lg=("kr", w2 + 1)))
        for j in range(8):
            for w in (w2, w2 + 1):
                QK.append(f"v_dot2_f32_bf16 v{LG+w}, v{Q+j}, v{KB+8*w+j}, {'0' if j == 0 else 'v%d' % (LG+w)}")
        QK += w2toreg(12 + w2) + w2toreg(13 + w2)
    for w in range(3): QK += vread(w)
    SMX = [f"s_lshl_b32 s{sT0}, s{sMT}, 7", f"s_lshl_b32 s{sT1}, s{sW}, 5", f"s_add_u32 s{sT0}, s{sT0}, s{sT1}",
           f"v_and_b32 v{a0}, 31, v{lane}", f"v_add_u32 v{a0}, s{sT0}, v{a0}", f"v_mov_b32 v{a1}, 0xcf6e6b28"]
    sMK = [None] + [f"s[{38+2*j}:{39+2*j}]" for j in range(1, 7)] + ["vcc"]
    SMX += [f"v_cmp_le_u32 {sMK[w]}, {2*w}, v{a0}" for w in range(7, 0, -1)]
    SMX += [f"v_cndmask_b32 v{LG+w}, v{a1}, v{LG+w}, {sMK[w]}" for w in range(7, 0, -1)]
    SMX += [f"v_max3_f32 v{a2}, v{LG}, v{LG+1}, v{LG+2}", f"v_max3_f32 v{a3}, v{LG+3}, v{LG+4}, v{LG+5}",
            f"v_max3_f32 v{a2}, v{a2}, v{LG+6}, v{LG+7}", f"s_mov_b32 s{sT0}, 0x3eb8aa3b", f"v_max_f32 v{a2}, v{a2}, v{a3}"]
    SMX += [f"v_sub_f32 v{LG+w}, v{LG+w}, v{a2}" for w in range(8)]
    SMX += [f"v_mul_f32 v{LG+w}, s{sT0}, v{LG+w}" for w in range(8)]
    SMX += [f"v_exp_f32 v{LG+w}, v{LG+w}" for w in range(8)]
    SMX += vread(3)
    SM = 40
    SMX += [f"v_pk_add_f32 v[{SM}:{SM+1}], v[{LG}:{LG+1}], v[{LG+2}:{LG+3}]", f"v_pk_add_f32 v[{SM+2}:{SM+3}], v[{LG+4}:{LG+5}], v[{LG+6}:{LG+7}]",
            f"v_pk_add_f32 v[{SM}:{SM+1}], v[{SM}:{SM+1}], v[{SM+2}:{SM+3}]", f"v_add_f32 v{SM}, v{SM}, v{SM+1}", f"v_rcp_f32 v{SM}, v{SM}", "s_nop 0"]
    SMX += [f"v_pk_mul_f32 v[{LG+2*j}:{LG+2*j+1}], v[{LG+2*j}:{LG+2*j+1}], v[{SM}:{SM+1}] op_sel_hi:[1,0]" for j in range(4)]
    O = 48
    AV = []
    for w in range(8):
        AV.append(W(lg=("vr", w)))
        pw = LG + (w & ~1); sel = w & 1
        for j in range(8):
            r = VB + 16 * (w & 3) + 2 * j
            if w == 0: AV.append(f"v_pk_mul_f32 v[{O+2*j}:{O+2*j+1}], v[{r}:{r+1}], v[{pw}:{pw+1}] op_sel:[0,{sel}] op_sel_hi:[1,{sel}]")
            else: AV.append(f"v_pk_fma_f32 v[{O+2*j}:{O+2*j+1}], v[{r}:{r+1}], v[{pw}:{pw+1}], v[{O+2*j}:{O+2*j+1}] op_sel:[0,{sel},0] op_sel_hi:[1,{sel},1]")
        if w + 4 < 8: AV += vread(w + 4)
    OP = 64
    dst = {0: 0, 1: 1, 4: 2, 5: 3, 2: 4, 3: 5, 6: 6, 7: 7}
    AV += [f"v_cvt_pk_bf16_f32 v{OP+dst[p]}, v{O+2*p}, v{O+2*p+1}" for p in range(8)]
    AV += [f"s_lshl_b32 s{sT0}, s{sSL}, 11", f"s_add_u32 s{sT0}, s{sT0}, s{sTb}"]
    AV += [f"v_permlane32_swap_b32 v{OP+j}, v{OP+4+j}" for j in range(4)]
    def hreg(n): return ("a", 4 * n) if n < 16 else ("v", 96 + 4 * (n - 16)) if n < 56 else ("a", 4 * (n - 56))
    sHA, sHB = sXO[1], sXO[2]
    def hload(ks):
        out = []
        if ks < 28:
            if ks % 4 == 0: out += [f"s_add_u32 s{sHA}, s{sH0}, s{sGK[ks>>2]}", f"s_add_u32 s{sHB}, s{sH1}, s{sGK[ks>>2]}"]
            so = (sHA, sHB)
        else:
            if ks == 32: out += [f"s_add_u32 s{sO0}, s{sO0}, 4096", f"s_add_u32 s{sO1}, s{sO1}, 4096"]
            so = (sO0, sO1)
        for i in range(2):
            t, r = hreg(2 * ks + i)
            out.append(("vm", ("h", 2 * ks + i), f"buffer_load_dwordx4 {t}[{r}:{r+3}], v{vL16}, {srd(SWS)}, s{so[i]} offen offset:{(ks&3)*1024} sc1"))
        return out
    def hcheck():
        while any(is_vm(it) and it[1] == "hp" for it in memq): emit(memq.pop(0))
        g.wait(vm=ids["hp"])
        e(f"v_cmp_ne_u32 vcc, 1, v{vPd}"); e("s_nop 4"); e("s_cbranch_vccnz L_hspin")
        g.label("L_hok")
        g.stamp("hpoll_ok")
        hl = []
        for ks in range(8): hl += hload(ks)
        memq[0:0] = hl
    R_ = o["att_ratio"]
    memq.extend(w2dma(list(range(20, 27))))
    if o["hp_issue"] == 0: memq[0:0] = hpoll
    weave(AT, memq, R_)
    push_front(memq, resid)
    if o["hp_issue"] == 1: memq[0:0] = hpoll
    weave(QK, memq, R_)
    memq.append(W(lg=("w2r", 19))); memq.extend(w2dma(list(range(27, 35))))
    if o["hp_issue"] == 2: memq[0:0] = hpoll
    if o["hp_check"] == 1: hcheck()
    weave(SMX, memq, R_)
    if o["hp_check"] == 2: hcheck()
    weave(AV, memq, R_)
    g.vm(f"buffer_store_dwordx4 v[{OP}:{OP+3}], v{vL16}, {srd(SWS)}, s{sT0} offen sc1")
    ids["ost"] = g.vm(f"buffer_store_dwordx4 v[{OP+4}:{OP+7}], v{vL16}, {srd(SWS)}, s{sT0} offen offset:1024 sc1")
    g.stamp("attn_end")
    if o["hp_check"] == 3: hcheck()
    ACC = 32; XR = 72
    e(f"v_and_b32 v{a0}, 15, v{lane}"); e(f"v_lshlrev_b32 v{a0}, 6, v{a0}"); e(f"v_bfe_u32 v{a1}, v{lane}, 4, 1"); e(f"v_mul_u32_u24 v{a1}, {RU[1]-RU[0]}, v{a1}")
    e(f"v_add3_u32 v{a0}, v{a0}, v{a1}, s{sRB}"); e(f"v_lshrrev_b32 v{a1}, 5, v{lane}"); e(f"v_lshl_add_u32 v{a0}, v{a1}, 3, v{a0}")
    e(f"v_bfe_u32 v{a1}, v{lane}, 2, 2"); e(f"v_lshl_add_u32 v{a0}, v{a1}, 4, v{a0}")
    for q in range(1, 4): e(f"v_xor_b32 v{a0+q}, {16*q}, v{a0}")
    assert not any(is_vm(it) and it[1] == "res" for it in memq)
    g.wait(vm=ids["res"])
    for q in range(4): ids["resr"] = g.lg(f"ds_read_b64 v[{XR+2*q}:{XR+2*q+1}], v{a0+q} offset:{RU[0]}")
    while any(is_vm(it) and it[1][0] == "h" for it in memq): emit(memq.pop(0))
    g.wait(lg=ids["resr"])
    for q in range(4):
        for h in range(2):
            e(f"v_lshlrev_b32 v{ACC+4*q+2*h}, 16, v{XR+2*q+h}"); e(f"v_and_b32 v{ACC+4*q+2*h+1}, s{sMASK}, v{XR+2*q+h}")
    e("s_nop 1")
    g.stamp("p2_start")
    FR2 = 64
    def w2frag(ks):
        if ks < 20: return
        emit(need(("w2", ks)))
        for nb in range(2):
            r = FR2 + 8 * (ks % 4) + 4 * nb
            for sec in range(2):
                ids[("w2l", ks)] = g.lg(f"ds_read_b64_tr_b16 a[{r+2*sec}:{r+2*sec+1}], v{vTW[nb]} offset:{unit[ks] + 1024*sec}")
    vRW = 1; vRR = [2, 3, 4]
    fin = [f"v_add_u32 v{vRW}, s{sRB}, v{vL16}"]
    for s in range(1, 4):
        fin += [f"s_xor_b32 s{sT0}, s{sW}, {s}", f"s_mul_i32 s{sT1}, s{sT0}, 40960", f"s_lshr_b32 s{sT0}, s{sT0}, 1", f"s_lshl_b32 s{sT0}, s{sT0}, 7",
                f"s_add_u32 s{sT0}, s{sT0}, s{sT1}", f"v_add_u32 v{vRR[s-1]}, s{sT0}, v{vL16}"]
    fin += [f"v_and_b32 v5, 31, v{lane}", "v_lshlrev_b32 v5, 10, v5", f"v_lshrrev_b32 v6, 5, v{lane}", f"v_lshl_add_u32 v{vXo}, v6, 4, v5"]
    Lk = o["L"]; nxt = 8; oflag = False
    pend = []
    def one_vm(q):
        while q:
            it = q.pop(0); emit(it)
            if is_vm(it): return True
        return False
    for ks in range(36):
        if ks == o["op_check"]:
            while any(is_vm(it) and it[1] == "op" for it in pend): emit(pend.pop(0))
            g.wait(vm=ids["op"])
            e(f"v_cmp_ne_u32 vcc, 1, v{vPd}"); e("s_nop 4"); e("s_cbranch_vccnz L_ospin")
            g.label("L_ook")
            g.stamp("opoll_ok")
        while nxt < 36 and nxt <= ks + Lk and (nxt < 28 or ks >= o["op_check"]):
            assert nxt < 28 or nxt - 28 < ks
            pend += hload(nxt); nxt += 1
        if ks == o["op_issue"]:
            pend.append(("vm", "op", f"buffer_load_dword v{vPd}, v{vPo}, {srd(SWS)}, 0 offen offset:128 sc1"))
        if ks == 21: memq.extend(w2dma([35]))
        while any(is_vm(it) and it[1] == ("h", 2 * ks + 1) for it in pend): emit(pend.pop(0))
        g.wait(vm=ids[("h", 2 * ks + 1)], lg=ids.get(("w2l", ks)))
        if not oflag and g.vm_done > ids["ost"]:
            pend.insert(0, ("vm", "of", f"buffer_store_dword v{vOne}, v{vFl}, {srd(SWS)}, 0 offen offset:128 sc1")); oflag = True
            g.stamp("oflag")
        g.stamp(f"k{ks}")
        order = [(0, 0), (0, 1), (1, 0), (1, 1)] if ks < 35 else [(0, 1), (1, 0), (1, 1), (0, 0)]
        for n_, (i, j) in enumerate(order):
            t, r = hreg(2 * ks + i)
            wr = (w2reg(ks) + 4 * j) if ks < 20 else (FR2 + 8 * (ks % 4) + 4 * j)
            d = f"v[{ACC+32*i+16*j}:{ACC+32*i+16*j+15}]"
            e(f"v_mfma_f32_32x32x16_bf16 {d}, a[{wr}:{wr+3}], {t}[{r}:{r+3}], {d if (ks or (i == 0 and j == 0)) else '0'}")
            if n_ == 0 and ks + 2 < 36: w2frag(ks + 2)
            if n_ in (1, 3): one_vm(pend) or one_vm(memq)
            elif n_ == 2: one_vm(memq) or one_vm(pend)
            elif ks + 2 < 20 or ks + 2 >= 36: one_vm(pend)
            if ks >= 24:
                for _ in range(3):
                    if fin: e(fin.pop(0))
    assert not pend and not memq
    assert oflag and not fin and o["op_issue"] < o["op_check"]
    g.stamp("p2_end")
    e("s_nop 8")
    for s in range(1, 4):
        for q in range(4):
            g.lg(f"ds_write_b128 v{vRW}, v[{ACC+16*s+4*q}:{ACC+16*s+4*q+3}] offset:{4096*s + 1024*q}")
    g.wait_all_lg()
    e("s_barrier")
    RD = 96
    for s in range(1, 4):
        for q in range(4):
            ids[("rr", s, q)] = g.lg(f"ds_read_b128 v[{RD+16*(s-1)+4*q}:{RD+16*(s-1)+4*q+3}], v{vRR[s-1]} offset:{4096*s + 1024*q}")
    for s in range(1, 4):
        for q in range(4):
            g.wait(lg=ids[("rr", s, q)])
            for h in range(2):
                a = ACC + 4 * q + 2 * h; b = RD + 16 * (s - 1) + 4 * q + 2 * h
                e(f"v_pk_add_f32 v[{a}:{a+1}], v[{a}:{a+1}], v[{b}:{b+1}]")
    PK = 48
    for j in range(8): e(f"v_cvt_pk_bf16_f32 v{PK+j}, v{ACC+2*j}, v{ACC+2*j+1}")
    e("s_nop 0")
    for p in range(2):
        e(f"v_permlane32_swap_b32 v{PK+4*p}, v{PK+4*p+2}"); e(f"v_permlane32_swap_b32 v{PK+4*p+1}, v{PK+4*p+3}")
    for p in range(2):
        g.vm(f"buffer_store_dwordx4 v[{PK+4*p}:{PK+4*p+3}], v{vXo}, {srd(SOUT)}, s{sXR} offen offset:{32*p}")
    if diag:
        g.stamp("end")
        e("s_memrealtime s[70:71]")
        e("s_waitcnt lgkmcnt(0) vmcnt(0)")
        e(f"s_lshl_b32 s{sT0}, s{sM2}, 3"); e(f"s_add_u32 s{sT0}, s{sT0}, s{sNT}"); e(f"s_lshl_b32 s{sT0}, s{sT0}, 2"); e(f"s_add_u32 s{sT0}, s{sT0}, s{sW}"); e(f"s_lshl_b32 s{sT0}, s{sT0}, 6"); e(f"s_add_u32 s{sT0}, s{sT0}, {0xB00000}")
        e(f"s_mov_b32 s{SWS+2}, 0x1000000")
        if o.get("dbgrep"):
            e(f"s_lshl_b32 s{sT1}, s{sM2}, 3"); e(f"s_add_u32 s{sT1}, s{sT1}, s{sNT}"); e(f"s_lshl_b32 s{sT1}, s{sT1}, 2"); e(f"s_add_u32 s{sT1}, s{sT1}, s{sW}")
            e(f"s_mov_b32 s{sT2}, 0x1000")
            for n_, wid in enumerate((0, 133 * 4, 255 * 4)):
                e(f"s_cmp_eq_u32 s{sT1}, {wid}"); e(f"s_cselect_b32 s{sT2}, {20*n_}, s{sT2}")
            e("s_sub_u32 s70, s70, s101")
            for i in range(1, 5):
                e(f"s_sub_u32 s{sT1}, s{ST0+2*i}, s{ST0}"); e(f"v_mov_b32 v1, s{sT1}"); e(f"v_mov_b32 v2, s{sT2}")
                e(f"buffer_store_dword v1, v2, {srd(SDBG)}, 0 offen offset:{4*(i-1)}")
            e(f"v_mov_b32 v1, s70"); e(f"buffer_store_dword v1, v2, {srd(SDBG)}, 0 offen offset:16")
            e("s_waitcnt vmcnt(0)"); e("s_endpgm")
        for i, r in [(i, ST0 + 2 * i) for i in range(len(g.stamp_names))] + [(13, 100), (14, 101), (15, 70)]:
            e(f"v_mov_b32 v1, s{r}"); e(f"v_mov_b32 v2, {4*i}")
            e(f"buffer_store_dword v1, v2, {srd(SWS)}, s{sT0} offen")
        e("s_waitcnt vmcnt(0)")
    g.label("L_end")
    e("s_endpgm")
    g.label("L_dbgspin")
    e(f"s_add_u32 s{sSPIN}, s{sSPIN}, 1"); e(f"s_cmp_gt_u32 s{sSPIN}, {SPIN_MAX}"); e("s_cbranch_scc1 L_dbgok")
    e("s_sleep 2")
    e(f"buffer_load_dword v{vCK}, off, {srd(SDBG)}, s{sT5} sc1")
    e("s_waitcnt vmcnt(0)")
    e(f"v_readfirstlane_b32 s{sT0}, v{vCK}")
    e(f"s_cmp_lg_u32 s{sT0}, 0")
    e("s_cbranch_scc0 L_dbgspin")
    e("s_branch L_dbgok")
    for nm, off, back in (("L_hspin", 0, "L_hok"), ("L_ospin", 128, "L_ook")):
        g.label(nm)
        e(f"s_add_u32 s{sSPIN}, s{sSPIN}, 1"); e(f"s_cmp_gt_u32 s{sSPIN}, {SPIN_MAX}"); e(f"s_cbranch_scc1 {back}")
        e(f"buffer_load_dword v{vPd}, v{vPo}, {srd(SWS)}, 0 offen offset:{off} sc1")
        e("s_waitcnt vmcnt(0)")
        e(f"v_cmp_ne_u32 vcc, 1, v{vPd}"); e("s_nop 4")
        e(f"s_cbranch_vccnz {nm}")
        e(f"s_branch {back}")
    g.label("L_codeend")
    hdr = open("cdna_kernels/" + NAME + ".s.ref").read().split("; Override")[0]
    txt = hdr + "; @launch grid=(256,1,1) block=(256,1,1) lds=163840\n"
    txt += f""".amdgcn_target "amdgcn-amd-amdhsa--gfx950"
.text
.globl {NAME}_kernel
.p2align 8
.type {NAME}_kernel,@function
{NAME}_kernel:
""" + "\n".join(g.L) + f"""
.section .rodata,"a"
.p2align 6
.amdhsa_kernel {NAME}_kernel
  .amdhsa_next_free_vgpr 512
  .amdhsa_next_free_sgpr 102
  .amdhsa_accum_offset 256
  .amdhsa_group_segment_fixed_size 0
  .amdhsa_kernarg_size 80
  .amdhsa_user_sgpr_count 2
  .amdhsa_user_sgpr_kernarg_segment_ptr 1
  .amdhsa_system_sgpr_workgroup_id_x 1
.end_amdhsa_kernel
"""
    return txt, g.stamp_names

if __name__ == "__main__":
    import json
    diag = "--diag" in sys.argv
    args = [a for a in sys.argv[1:] if not a.startswith("--")]
    opt = json.loads(args[1]) if len(args) > 1 else None
    txt, names = gen(diag, opt)
    open(args[0] if args else "cdna_kernels/" + NAME + ".s", "w").write(txt)
    print("stamps:", names, "lines:", txt.count("\n"))
```

```python
import sys

NAME = "parallel_sum__sliding_local_dilated__glu_gated_reglu__prompt"
FL = 0xA00000
WS_BYTES = FL + 0x10000
OOB = 0x7ff00000
NSTAMP = 9
ST0 = 82

class G:
    def __init__(self, diag=False, stamps=None):
        self.L = []
        self.vm_n = 0; self.vm_done = 0
        self.lg_n = 0; self.lg_done = 0
        self.smem = False
        self.diag = diag
        self.want = stamps
        self.stamp_names = []
    def e(self, s): self.L.append("    " + s)
    def label(self, s): self.L.append(s + ":")
    def vm(self, s):
        if " lds" in s and self.L[-1].split()[:2] in (["s_add_u32", "m0,"], ["s_mov_b32", "m0,"]): self.e("s_nop 0")
        self.e(s); self.vm_n += 1; return self.vm_n - 1
    def lg(self, s):
        if self.lg_n - self.lg_done >= 15: self.wait(lg=self.lg_done)
        self.e(s); self.lg_n += 1
        return self.lg_n - 1
    def wait(self, vm=None, lg=None):
        parts = []
        if vm is not None and vm >= self.vm_done:
            n = self.vm_n - 1 - vm
            parts.append(f"vmcnt({min(n, 63)})"); self.vm_done = vm + 1
        if lg is not None and lg >= self.lg_done:
            n = self.lg_n - 1 - lg
            if self.smem:
                n = 0; self.smem = False; self.lg_done = self.lg_n
            else:
                self.lg_done = lg + 1
            assert n <= 15
            parts.append(f"lgkmcnt({n})")
        if parts:
            self.e("s_waitcnt " + " ".join(parts)); return 1
        return 0
    def wait_all_lg(self):
        self.e("s_waitcnt lgkmcnt(0)"); self.lg_done = self.lg_n; self.smem = False
    def stamp(self, name):
        if not self.diag or (self.want and name not in self.want): return
        n = len(self.stamp_names)
        assert n < NSTAMP, name
        self.e(f"s_memtime s[{ST0+2*n}:{ST0+2*n+1}]"); self.smem = True
        self.stamp_names.append(name)

def RBc(x): return 40960 * x + 128 * (x >> 1)

DEFAULT_STAMPS = ["start", "x_done", "mfma_start", "pass1_end", "pass2_end", "attn_end", "p2_start", "p2_end", "end"]

def gen(diag=False, opt=None):
    o = dict(rotm=8, D=7, WB=3, dmacost=2, L=6, op_issue=16, op_check=21, hflag_delay=36, rot2=2, codepf=1, stamps=DEFAULT_STAMPS,
             hp_issue=2, hp_check=2, att_ratio=12, epi_over=4, w0_first=2, rowrot=1, s_ratio=15, burst=5, w0_pos=7, dma_gap=2, dma_gap2=2, st_early=1, touch=1)
    if opt: o.update(opt)
    g = G(diag, o["stamps"]); e = g.e
    sW, sMT, sSL, sROT, sM2, sNT, sRB, sMASK = 3, 4, 5, 6, 7, 60, 61, 62
    SX, SW1, SQKV, SWD, SWO, SWS, SOUT, SDBG = 8, 12, 16, 20, 24, 28, 32, 36
    sP1 = [40 + i for i in range(8)]
    sP2 = [48 + i for i in range(4)]
    sXO = [64 + i for i in range(8)]
    sT0, sT1, sT2, sT3 = 72, 73, 74, 0
    sHST = 52; sW2D = 53; sW2O = 54; sH0 = 55; sH1 = 56; sO0 = 57; sO1 = 58; sTb = 59; sT4 = 63; sT5 = 1
    sGK = [75 + i for i in range(7)]
    sDL = 101 if not diag else 2
    sSPIN = 100; SPIN_MAX = 100000
    def srd(r): return f"s[{r}:{r+3}]"
    XN = 128; PUB = 80; ACCV = 32
    def xn(k): return XN + 4 * k
    vL16 = 0
    vD2 = [1, 2, 3]
    vT2 = [4, 5, 6, 7]
    vT1 = [8, 9]
    vR, vC = 10, 11
    vTmp = [12, 13, 14, 15]
    vHA = 12
    vHR = [16, 17]
    vDW = [18, 19, 20, 21]
    vCK = 22
    lane = 23
    vTH = [24, 25, 26, 27]
    vTW = [28, 29]
    vFl = 30; vPo = 31
    vD1 = [120 + i for i in range(7)]
    vSg = 127
    vTouch = 119
    PU = [0, 3, 7, 10, 14, 17, 21, 25, 29]
    pureg = {k: PUB + 4 * i for i, k in enumerate(PU)}
    def acc1(b): return ("v", ACCV + 16 * b) if b < 3 else ("a", 16 * (b - 3))
    def rr(t, r, n): return f"{t}[{r}:{r+n-1}]"
    FR = 64
    HX = 96
    D = o["D"]; WB = o["WB"]
    ids = {}

    def emit(it):
        if isinstance(it, str): e(it)
        elif it[0] == "vm": ids[it[1]] = g.vm(it[2])
        elif it[0] == "lg": ids[it[1]] = g.lg(it[2])
        elif it[0] == "fn": it[1]()
    def emit_all(items):
        for it in items: emit(it)
    def is_vm(it): return (not isinstance(it, str)) and it[0] == "vm"
    def weave(work, mem, ratio):
        n = 0
        for j, it in enumerate(work):
            n0 = len(g.L); emit(it); n += len(g.L) - n0
            nx = work[j + 1] if j + 1 < len(work) else None
            if n >= ratio and not (isinstance(nx, str) and nx.startswith("s_cselect")):
                n = 0
                while mem:
                    m = mem.pop(0); emit(m)
                    if is_vm(m): break
    def push_front(q, items, after_w1=False):
        j = 0
        if after_w1:
            for n_, it in enumerate(q):
                if is_vm(it) and it[1][0] == "w1": j = n_ + 1
        while j < len(q) and not (isinstance(q[j], str) and q[j].startswith("s_add_u32 m0")): j += 1
        q[j:j] = items
    W = lambda **kw: ("fn", lambda: g.wait(**{k: (ids[v] if not isinstance(v, int) else v) for k, v in kw.items()}))

    e("s_cmp_ge_u32 s2, 256")
    e("s_cbranch_scc1 L_end")
    g.stamp("start")
    if diag: e("s_memrealtime s[70:71]"); e("s_waitcnt lgkmcnt(0)"); e("s_mov_b32 s101, s70")
    for r, off in ((SX, 0), (SQKV, 8), (SWO, 16), (SWD, 48), (SOUT, 56), (SDBG, 64), (SWS, 72)):
        e(f"s_load_dwordx2 s[{r}:{r+1}], s[0:1], {off}")
    e("s_load_dwordx4 s[40:43], s[0:1], 32")
    e("v_lshrrev_b32 v1, 6, v0")
    e(f"v_and_b32 v{lane}, 63, v0")
    e(f"v_readfirstlane_b32 s{sW}, v1")
    e(f"s_and_b32 s{sT0}, s2, 7"); e(f"s_lshr_b32 s{sT1}, s2, 3")
    vHRAW = 32
    vXD = [48, 49, 50, 51]; vXR = [52, 53, 54, 55]; vHW = [56, 57, 58, 59]
    vS = [60, 61]; vQ = [62, 63]; vHo = 64; vONE = 65; hS = [77, 78]; hQ = [79, 64]
    t0, t1, t2, t3 = 66, 67, 68, 69
    hr, hc = 70, 71
    vZ = 72
    if o["codepf"]:
        e("s_getpc_b64 s[44:45]"); g.label("L_pc")
        e(f"s_mov_b32 s46, L_codeend-L_pc"); e("s_mov_b32 s47, 0x20000")
        e(f"s_lshl_b32 s{sT2}, s{sT1}, 2"); e(f"s_add_u32 s{sT2}, s{sT2}, s{sW}"); e(f"s_lshl_b32 s{sT2}, s{sT2}, 8")
        e(f"v_lshlrev_b32 v{t0}, 7, v{lane}"); e(f"v_cmp_gt_u32 vcc, 2, v{lane}"); e(f"v_add_u32 v{t0}, s{sT2}, v{t0}"); e(f"v_mov_b32 v{t1}, {OOB}")
        e(f"v_cndmask_b32 v{t0}, v{t1}, v{t0}, vcc")
        g.vm(f"buffer_load_dword v{vC}, v{t0}, s[44:47], 0 offen")
    e(f"s_lshr_b32 s{sMT}, s{sT0}, 1"); e(f"s_lshl_b32 s{sMT}, s{sMT}, 2"); e(f"s_and_b32 s{sT2}, s{sT1}, 3"); e(f"s_add_u32 s{sMT}, s{sMT}, s{sT2}")
    e(f"s_and_b32 s{sSL}, s{sT0}, 1"); e(f"s_lshl_b32 s{sSL}, s{sSL}, 3"); e(f"s_lshr_b32 s{sNT}, s{sT1}, 2"); e(f"s_add_u32 s{sSL}, s{sSL}, s{sNT}")
    e(f"s_lshl_b32 s{sM2}, s{sT0}, 2"); e(f"s_add_u32 s{sM2}, s{sM2}, s{sT2}")
    if o["rotm"] == 4:
        e(f"s_and_b32 s{sROT}, s{sMT}, 1"); e(f"s_lshl_b32 s{sROT}, s{sROT}, 2")
    elif o["rotm"] == 2:
        e(f"s_lshl_b32 s{sROT}, s{sT2}, 1")
    elif o["rotm"] == 8:
        e(f"s_lshr_b32 s{sROT}, s{sMT}, 2"); e(f"s_lshl_b32 s{sROT}, s{sROT}, 1")
    elif o["rotm"] == 1:
        e(f"s_lshl_b32 s{sROT}, s{sT2}, 1"); e(f"s_bfe_u32 s{sT2}, s{sMT}, 0x10002"); e(f"s_add_u32 s{sROT}, s{sROT}, s{sT2}")
    else:
        e(f"s_mov_b32 s{sROT}, 0")
    e(f"s_add_u32 s{sROT}, s{sROT}, s{sSL}"); e(f"s_and_b32 s{sROT}, s{sROT}, 7")
    sJ8 = sH0
    if o["rowrot"]: e(f"s_and_b32 s{sJ8}, s{sMT}, 3"); e(f"s_lshl_b32 s{sJ8}, s{sJ8}, 3")
    else: e(f"s_mov_b32 s{sJ8}, 0")
    e(f"s_mul_i32 s{sRB}, s{sW}, 40960"); e(f"s_lshr_b32 s{sT0}, s{sW}, 1"); e(f"s_lshl_b32 s{sT0}, s{sT0}, 7"); e(f"s_add_u32 s{sRB}, s{sRB}, s{sT0}")
    e(f"s_lshl_b32 s{sXO[0]}, s{sROT}, 7")
    e(f"s_lshl_b32 s{sTb}, s{sMT}, 17"); e(f"s_lshl_b32 s{sT0}, s{sW}, 15"); e(f"s_add_u32 s{sTb}, s{sTb}, s{sT0}")
    e(f"s_mov_b32 s{SX+2}, 2097152"); e(f"s_mov_b32 s{SX+3}, 0x20000")
    e(f"v_lshlrev_b32 v{vL16}, 4, v{lane}")
    e(f"v_lshrrev_b32 v{t0}, 4, v{lane}")
    e(f"v_lshrrev_b32 v{t2}, 3, v{lane}"); e(f"v_lshlrev_b32 v{t2}, 10, v{t2}"); e(f"v_and_b32 v{t3}, 7, v{lane}"); e(f"v_xor_b32 v{t3}, v{t3}, v{t0}")
    e(f"v_add_u32 v{t2}, s{sTb}, v{t2}")
    e(f"v_lshl_add_u32 v{vXD[0]}, v{t3}, 4, v{t2}"); e(f"v_xor_b32 v{vXD[1]}, 64, v{vXD[0]}")
    e(f"v_add_u32 v{vXD[2]}, {2*7168}, v{vXD[0]}"); e(f"v_add_u32 v{vXD[3]}, {3*7168}, v{vXD[1]}"); e(f"v_add_u32 v{vXD[1]}, 7168, v{vXD[1]}")
    e(f"s_and_b32 s{sT1}, s{sW}, 1"); e(f"s_mul_i32 s{sT1}, s{sT1}, {32*3584}"); e(f"s_mul_i32 s{sT2}, s{sSL}, 224"); e(f"s_add_u32 s{sT1}, s{sT1}, s{sT2}")
    e(f"s_add_u32 s{sT1}, s{sT1}, 4096")
    e(f"v_add_u32 v{t2}, s{sT1}, v{vL16}"); e(f"s_movk_i32 s{sT2}, 3584")
    VD = []
    for i in range(7):
        VD += [f"v_add_u32 v{t0}, {64*i}, v{lane}", f"v_mul_u32_u24 v{t0}, 4682, v{t0}", f"v_lshrrev_b32 v{t0}, 16, v{t0}"]
        if i == 4: VD += [f"v_add_u32 v{t2}, 4096, v{t2}"]
        VD += [f"v_mul_u32_u24 v{t1}, 224, v{t0}", f"v_xor_b32 v{t0}, s{sJ8}, v{t0}", f"v_sub_u32 v{t1}, v{t2}, v{t1}",
               f"v_mad_u32_u24 v{vD1[i]}, v{t0}, s{sT2}, v{t1}"]
    for cc in range(448): assert (cc * 4682) >> 16 == cc // 14
    emit_all(VD[:14])
    e(f"s_add_u32 m0, s{sRB}, 7168")
    e("s_waitcnt lgkmcnt(0)"); g.smem = False
    g.stamp("args")
    def xdma(s):
        out = [] if s == 0 else [f"s_add_u32 m0, s{sRB}, {7168 + 4096*s}"]
        return out + [("vm", ("xd", s), f"buffer_load_dwordx4 v{vXD[i]}, {srd(SX)}, s{sXO[s]} offen offset:{1024*i} lds") for i in range(4)]
    emit_all(xdma(0))
    e(f"s_cmp_ge_u32 s{sW}, 2"); e(f"s_cselect_b32 s{SW1}, s42, s40"); e(f"s_cselect_b32 s{SW1+1}, s43, s41")
    e(f"s_sub_u32 s{SW1}, s{SW1}, 4096"); e(f"s_subb_u32 s{SW1+1}, s{SW1+1}, 0")
    e(f"s_mov_b32 s{SW1+2}, {1835008 + 4096}"); e(f"s_mov_b32 s{SW1+3}, 0x20000"); e(f"s_mul_i32 s{sP1[0]}, s{sXO[0]}, 1792")

    SLOT = {0: 0, 1: 1, 2: 2, 3: 3, 4: 4, 5: 0, 6: 1, 7: 2, 8: 3, 9: 0, 10: 1, 11: 4}
    def dma1(st):
        out = [f"s_add_u32 m0, s{sRB}, {7168*SLOT[st]}"]
        for i in range(7):
            if i == 4: out.append(f"s_add_u32 m0, s{sRB}, {7168*SLOT[st] + 4096}")
            out.append(("vm", ("w1", st), f"buffer_load_dwordx4 v{vD1[i]}, {srd(SW1)}, s{sP1[st]} offen offset:{(i&3)*1024} lds"))
        return out
    def dma2(st):
        q = st - 8
        out = [f"s_add_u32 m0, s{sRB}, {7168*SLOT[st]}"]
        for i in range(6):
            if i == 3: out += [f"s_add_u32 m0, s{sRB}, {7168*SLOT[st] + 3072}", f"s_add_u32 s{sP2[q]}, s{sP2[q]}, s{sDL}"]
            out.append(("vm", ("w1", st), f"buffer_load_dwordx4 v{vD2[i%3]}, {srd(SQKV)}, s{sP2[q]} offen offset:{(i%3)*1024} lds"))
        return out

    w0 = dma1(0)
    nfirst = o["w0_first"]
    while nfirst and w0:
        it = w0.pop(0); emit(it); nfirst -= is_vm(it)
    A = [f"s_lshl_b32 s{sT4}, s{sMT}, 7", f"s_sub_i32 s{sT4}, s{sT4}, 16", f"s_max_i32 s{sT4}, s{sT4}, 0",
         f"s_lshl_b32 s{sT0}, s{sW}, 2", f"s_add_u32 s{sT4}, s{sT4}, s{sT0}", f"s_lshl_b32 s{sT4}, s{sT4}, 10",
         f"v_lshrrev_b32 v{t0}, 4, v{lane}", f"v_lshlrev_b32 v{vHo}, 10, v{t0}", f"v_and_b32 v{t1}, 15, v{lane}", f"v_lshl_add_u32 v{vHo}, v{t1}, 4, v{vHo}"]
    for s in range(1, 8): A += [f"s_add_u32 s{sXO[s]}, s{sXO[s-1]}, 128", f"s_and_b32 s{sXO[s]}, s{sXO[s]}, 0x380"]
    A += [f"s_mul_i32 s{sP1[s]}, s{sXO[s]}, 1792" for s in range(1, 8)]
    A += [f"s_mov_b32 s{sMASK}, 0xffff0000", f"s_mov_b32 s{sSPIN}, 0", f"v_mov_b32 v{vONE}, 0x3f803f80"]
    A += [f"s_sub_u32 s{SQKV}, s{SQKV}, 4096", f"s_subb_u32 s{SQKV+1}, s{SQKV+1}, 0"]
    for r, n in ((SQKV, 1572864 + 4096), (SWO, 524288), (SWD, 1835008), (SOUT, 2097152), (SDBG, 256), (SWS, WS_BYTES)):
        A += [f"s_mov_b32 s{r+2}, {n}", f"s_mov_b32 s{r+3}, 0x20000"]
    A += [f"v_and_b32 v{t0}, 31, v{lane}", f"v_lshlrev_b32 v{t1}, 7, v{t0}", f"v_add_u32 v{t1}, s{sRB}, v{t1}",
          f"v_bfe_u32 v{t2}, v{lane}, 1, 3", f"v_lshrrev_b32 v{t3}, 5, v{lane}", f"v_xor_b32 v{t2}, v{t2}, v{t3}", f"v_lshl_add_u32 v{vXR[0]}, v{t2}, 4, v{t1}",
          f"s_lshl_b32 s{sT0}, s{sJ8}, 1", f"v_xor_b32 v{vXR[0]}, s{sT0}, v{vXR[0]}"]
    A += [f"v_xor_b32 v{vXR[jj]}, {32*jj}, v{vXR[0]}" for jj in (1, 2, 3)]
    halo_ld = [("vm", "halo", f"buffer_load_dwordx4 v[{vHRAW+4*i}:{vHRAW+4*i+3}], v{vHo}, {srd(SX)}, s{sT4} offen offset:{256*i}") for i in range(4)]
    B = []
    B += [f"v_lshrrev_b32 v{t0}, 5, v{lane}", f"v_bfe_u32 v{t1}, v{lane}, 2, 2", f"v_lshl_add_u32 v{t0}, v{t0}, 3, v{t1}",
          f"v_mul_u32_u24 v{t0}, 224, v{t0}", f"v_and_b32 v{t1}, 3, v{lane}", f"v_lshl_add_u32 v{t0}, v{t1}, 3, v{t0}",
          f"v_bfe_u32 v{t1}, v{lane}, 4, 1", f"v_mul_u32_u24 v{t1}, {RBc(2)}, v{t1}", f"v_add_u32 v{vT1[0]}, v{t0}, v{t1}", f"v_add_u32 v{vT1[1]}, 40960, v{vT1[0]}"]
    B += [f"v_lshrrev_b32 v{t0}, 4, v{lane}", f"s_lshl_b32 s{sT0}, s{sW}, 2", f"v_add_u32 v{t1}, s{sT0}, v{t0}", f"v_and_b32 v{t1}, 7, v{t1}",
          f"v_lshlrev_b32 v{t0}, 10, v{t0}", f"v_add_u32 v{t0}, s{sRB}, v{t0}",
          f"s_lshl_b32 s{sT0}, s{sROT}, 3", f"v_and_b32 v{t2}, 15, v{lane}", f"v_xor_b32 v{t2}, v{t2}, v{t1}", f"v_subrev_u32 v{t2}, s{sT0}, v{t2}"]
    for i in range(4):
        B += [f"v_add_u32 v{t3}, {16*i}, v{t2}", f"v_and_b32 v{t3}, 63, v{t3}", f"v_lshl_add_u32 v{vHW[i]}, v{t3}, 4, v{t0}"]
    B += [f"v_bfe_u32 v{t0}, v{lane}, 2, 2", f"v_mul_u32_u24 v{t1}, 40960, v{t0}", f"v_lshrrev_b32 v{t0}, 1, v{t0}", f"v_lshl_add_u32 v{t1}, v{t0}, 7, v{t1}",
          f"v_and_b32 v{t0}, 3, v{lane}", f"v_lshl_add_u32 v{t1}, v{t0}, 10, v{t1}",
          f"v_lshrrev_b32 v{t0}, 4, v{lane}", f"v_and_b32 v{t2}, 7, v{lane}", f"v_xor_b32 v{t0}, v{t0}, v{t2}",
          f"v_lshl_add_u32 v{vHR[0]}, v{t0}, 4, v{t1}", f"s_lshl_b32 s{sT0}, s{sJ8}, 1", f"v_xor_b32 v{vHR[0]}, s{sT0}, v{vHR[0]}", f"v_xor_b32 v{vHR[1]}, 64, v{vHR[0]}"]
    B += [f"v_lshrrev_b32 v{t0}, 3, v{lane}", f"v_lshlrev_b32 v{t0}, 10, v{t0}", f"v_bfe_u32 v{t1}, v{lane}, 4, 1", f"v_lshlrev_b32 v{t1}, 2, v{t1}",
          f"v_and_b32 v{t2}, 7, v{lane}", f"v_xor_b32 v{t1}, v{t1}, v{t2}", f"v_lshl_add_u32 v{vDW[0]}, v{t1}, 4, v{t0}"]
    B += [f"v_add_u32 v{vDW[i]}, {7168*i}, v{vDW[0]}" for i in (1, 2, 3)]
    B += [f"v_mov_b32 v{vZ+i}, 0" for i in range(4)]
    B += [f"s_lshl_b32 s{sT0}, s{sMT}, 12", f"s_lshl_b32 s{sT1}, s{sW}, 10", f"s_add_u32 s{sT0}, s{sT0}, s{sT1}", f"s_add_u32 s{sT0}, s{sT0}, {FL}",
          f"s_cmp_eq_u32 s{sSL}, 0", f"s_cselect_b32 s{sT0}, s{sT0}, {OOB}", f"v_add_u32 v{vZ+4}, s{sT0}, v{vL16}"]
    B += [f"s_cmp_ge_u32 s{sW}, 2"] + [f"s_cselect_b32 s{sP2[q]}, s{sXO[2*q+1]}, s{sXO[2*q]}" for q in range(4)]
    B += [f"s_mul_i32 s{sP2[q]}, s{sP2[q]}, 1536" for q in range(4)]
    B += [f"s_and_b32 s{sT0}, s{sJ8}, 16", f"s_mul_i32 s{sT0}, s{sT0}, 3072"] + [f"s_add_u32 s{sP2[q]}, s{sP2[q]}, s{sT0}" for q in range(4)]
    B += [f"s_lshl_b32 s{sT0}, s{sT0}, 1", f"s_sub_i32 s{sDL}, {16*3072}, s{sT0}", f"s_and_b32 s{sT0}, s{sJ8}, 8"]
    B += [f"s_and_b32 s{sT1}, s{sW}, 1", f"s_mul_i32 s{sT1}, s{sT1}, {32*3072}", f"s_lshl_b32 s{sT2}, s{sSL}, 6", f"s_add_u32 s{sT1}, s{sT1}, s{sT2}", f"s_add_u32 s{sT1}, s{sT1}, 4096"]
    for i in range(3):
        B += [f"v_add_u32 v{t0}, {64*i}, v{lane}", f"v_mul_u32_u24 v{t1}, 5462, v{t0}", f"v_lshrrev_b32 v{t1}, 16, v{t1}",
              f"v_mul_u32_u24 v{t2}, 12, v{t1}", f"v_sub_u32 v{t0}, v{t0}, v{t2}",
              f"v_xor_b32 v{t1}, s{sT0}, v{t1}", f"v_mul_u32_u24 v{t2}, 3072, v{t1}", f"v_lshrrev_b32 v{t1}, 2, v{t0}", f"v_lshl_add_u32 v{t2}, v{t1}, 10, v{t2}",
              f"v_and_b32 v{t0}, 3, v{t0}", f"v_lshl_add_u32 v{t2}, v{t0}, 4, v{t2}", f"v_add_u32 v{vD2[i]}, s{sT1}, v{t2}"]
        if i: B.append(f"v_subrev_u32 v{vD2[i]}, {1024*i}, v{vD2[i]}")
    for cc in range(192): assert (cc * 5462) >> 16 == cc // 12
    B += [f"v_bfe_u32 v{t1}, v{lane}, 2, 2", f"v_and_b32 v{t3}, 3, v{lane}", f"v_lshrrev_b32 v{t0}, 5, v{lane}", f"v_lshl_add_u32 v{t0}, v{t0}, 3, v{t1}",
          f"v_mul_u32_u24 v{t0}, 192, v{t0}", f"v_lshl_add_u32 v{t0}, v{t3}, 3, v{t0}",
          f"v_bfe_u32 v{t2}, v{lane}, 4, 1", f"v_lshl_add_u32 v{vT2[0]}, v{t2}, 5, v{t0}"]
    B += [f"v_add_u32 v{vT2[r]}, {RBc(r)}, v{vT2[0]}" for r in (1, 2, 3)]
    B += [f"v_lshrrev_b32 v{t0}, 4, v{lane}", f"v_lshl_add_u32 v{t0}, v{t0}, 3, v{t1}", f"v_mul_u32_u24 v{t0}, 192, v{t0}", f"v_lshl_add_u32 v{t0}, v{t3}, 3, v{t0}",
          f"s_lshl_b32 s{sT1}, s{sW}, 5", f"s_add_u32 s{sT1}, s{sT1}, 64", f"v_add_u32 v{vTH[0]}, s{sT1}, v{t0}"]
    B += [f"v_add_u32 v{vTH[r]}, {RBc(r)}, v{vTH[0]}" for r in (1, 2, 3)]
    B += [f"v_lshrrev_b32 v{t0}, 5, v{lane}", f"v_lshl_add_u32 v{t0}, v{t0}, 2, v{t1}", f"v_lshlrev_b32 v{t0}, 7, v{t0}",
          f"v_add_u32 v{t0}, s{sRB}, v{t0}", f"v_lshl_add_u32 v{t0}, v{t3}, 3, v{t0}", f"v_lshl_add_u32 v{t0}, v{t2}, 5, v{t0}",
          f"v_bfe_u32 v{t1}, v{lane}, 3, 1", f"s_and_b32 s{sT1}, s{sW}, 1", f"v_xor_b32 v{t1}, s{sT1}, v{t1}", f"v_lshl_add_u32 v{vTW[0]}, v{t1}, 6, v{t0}",
          f"v_xor_b32 v{vTW[1]}, 64, v{vTW[0]}"]
    B += [f"s_lshl_b32 s{sT0}, s{sMT}, 1", f"s_lshr_b32 s{sT1}, s{sW}, 1", f"s_add_u32 s{sT0}, s{sT0}, s{sT1}", f"s_lshl_b32 s{sT0}, s{sT0}, 11",
          f"s_lshl_b32 s{sT1}, s{sSL}, 3", f"s_add_u32 s{sT0}, s{sT0}, s{sT1}", f"s_and_b32 s{sT1}, s{sW}, 1", f"s_lshl_b32 s{sT1}, s{sT1}, 2",
          f"s_add_u32 s{sT0}, s{sT0}, s{sT1}", f"s_add_u32 s{sT0}, s{sT0}, {FL}",
          f"v_lshlrev_b32 v{vFl}, 8, v{lane}", f"v_add_u32 v{vFl}, s{sT0}, v{vFl}", f"v_cmp_gt_u32 vcc, 8, v{lane}", f"v_mov_b32 v{t0}, {OOB}",
          f"s_lshl_b32 s{sT0}, s{sM2}, 3", f"v_cndmask_b32 v{vFl}, v{t0}, v{vFl}, vcc",
          f"s_add_u32 s{sT0}, s{sT0}, s{sNT}", f"s_lshl_b32 s{sT0}, s{sT0}, 8", f"s_lshl_b32 s{sT1}, s{sW}, 5",
          f"s_add_u32 s{sT0}, s{sT0}, s{sT1}", f"s_add_u32 s{sT0}, s{sT0}, {FL}",
          f"v_and_b32 v{vPo}, 7, v{lane}", f"v_lshlrev_b32 v{vPo}, 2, v{vPo}", f"v_add_u32 v{vPo}, s{sT0}, v{vPo}",
          f"s_lshl_b32 s{sT5}, s{sMT}, 2"] + ([f"s_add_u32 s{sT5}, s{sT5}, 64"] if o.get("dbgrep") else []) + [
          f"s_or_b32 s{sT1}, s{sSL}, s{sW}", f"s_cmp_eq_u32 s{sT1}, 0", f"s_cselect_b32 s{sT0}, s{sT5}, 0x1000",
          f"v_lshlrev_b32 v{vSg}, 12, v{lane}", f"v_add_u32 v{vSg}, s{sT0}, v{vSg}", f"v_mov_b32 v{vCK}, 1"]
    B += [f"s_lshl_b32 s{sT0}, s{sM2}, 3", f"s_add_u32 s{sT0}, s{sT0}, s{sNT}", f"s_lshl_b32 s{sT0}, s{sT0}, 2", f"s_add_u32 s{sT0}, s{sT0}, s{sW}", f"s_lshl_b32 s{sT0}, s{sT0}, 9",
          f"v_lshlrev_b32 v{vTouch}, 7, v{lane}", f"v_add_u32 v{vTouch}, s{sT0}, v{vTouch}", f"v_cmp_gt_u32 vcc, 4, v{lane}", f"v_mov_b32 v{t0}, {OOB}", "s_nop 0",
          f"v_cndmask_b32 v{vTouch}, v{t0}, v{vTouch}, vcc",
          f"s_lshr_b32 s{sT0}, s{sT0}, 2", f"s_mul_i32 s{sT0}, s{sT0}, 14", f"v_lshlrev_b32 v{vTouch-1}, 7, v{lane}", f"v_cmp_gt_u32 vcc, 14, v{lane}",
          f"v_add_u32 v{vTouch-1}, s{sT0}, v{vTouch-1}", "s_nop 0", f"v_cndmask_b32 v{vTouch-1}, v{t0}, v{vTouch-1}, vcc"]
    B += [f"s_lshl_b32 s{sT0}, s{sM2}, 1", f"s_lshr_b32 s{sT1}, s{sW}, 1", f"s_add_u32 s{sT2}, s{sT0}, s{sT1}", f"s_xor_b32 s{sT3}, s{sT2}, 1",
          f"s_mul_i32 s{sT2}, s{sT2}, {144*1024}", f"s_mul_i32 s{sT3}, s{sT3}, {144*1024}",
          f"s_mul_i32 s{sT0}, s{sW}, {28*1024}", f"s_add_u32 s{sT0}, s{sT0}, {32*1024}", f"s_add_u32 s{sH0}, s{sT2}, s{sT0}", f"s_add_u32 s{sH1}, s{sT3}, s{sT0}",
          f"s_lshl_b32 s{sT0}, s{sW}, 13", f"s_add_u32 s{sO0}, s{sT2}, s{sT0}", f"s_add_u32 s{sO1}, s{sT3}, s{sT0}"]
    B += [f"s_lshl_b32 s{sTb}, s{sMT}, 2", f"s_add_u32 s{sTb}, s{sTb}, s{sW}", f"s_mul_i32 s{sTb}, s{sTb}, {144*1024}",
          f"s_mul_i32 s{sT0}, s{sSL}, 7168", f"s_add_u32 s{sHST}, s{sTb}, s{sT0}", f"s_add_u32 s{sHST}, s{sHST}, {32*1024}",
          f"s_lshl_b32 s{sT0}, s{sNT}, 7", f"s_mul_i32 s{sW2D}, s{sW}, {448*1024}", f"s_add_u32 s{sW2D}, s{sW2D}, s{sT0}",
          f"s_lshl_b32 s{sW2O}, s{sW}, 17", f"s_add_u32 s{sW2O}, s{sW2O}, s{sT0}"]
    if o["rot2"]:
        B += [f"s_and_b32 s{sT0}, s{sM2}, 3", f"s_lshl_b32 s{sT0}, s{sT0}, 1", f"s_lshr_b32 s{sT1}, s{sM2}, 2", f"s_add_u32 s{sT0}, s{sT0}, s{sT1}"]
        if o["rot2"] == 1: B += [f"s_add_u32 s{sT0}, s{sT0}, s{sNT}"]
        if o["rot2"] == 3: B += [f"s_and_b32 s{sT1}, s{sNT}, 1", f"s_mul_i32 s{sT1}, s{sT1}, 3", f"s_add_u32 s{sT0}, s{sT0}, s{sT1}"]
        if o["rot2"] == 4: B += [f"s_and_b32 s{sT1}, s{sNT}, 1", f"s_add_u32 s{sT0}, s{sT0}, s{sT1}"]
        B += [f"s_mul_i32 s{sT1}, s{sT0}, 37", f"s_lshr_b32 s{sT1}, s{sT1}, 8", f"s_mul_i32 s{sT1}, s{sT1}, 7", f"s_sub_u32 s{sT0}, s{sT0}, s{sT1}", f"s_lshl_b32 s{sGK[0]}, s{sT0}, 12"]
        for x in range(21): assert (x * 37) >> 8 == x // 7
    else:
        B += [f"s_mov_b32 s{sGK[0]}, 0"]
    for j in range(1, 7):
        B += [f"s_add_u32 s{sGK[j]}, s{sGK[j-1]}, 4096", f"s_cmp_eq_u32 s{sGK[j]}, {7*4096}", f"s_cselect_b32 s{sGK[j]}, 0, s{sGK[j]}"]

    def ln_scalars(vs, vq, r, c, ta, tb):
        return [f"v_mul_f32 v{vs}, 0x3b000000, v{vs}", f"v_mul_f32 v{vq}, 0x3b000000, v{vq}", f"v_fma_f32 v{vq}, -v{vs}, v{vs}, v{vq}",
                f"v_max_f32 v{vq}, 0, v{vq}", f"v_cvt_pk_bf16_f32 v{ta}, v{vs}, v{vq}", f"v_and_b32 v{tb}, s{sMASK}, v{ta}",
                f"v_add_f32 v{tb}, 0x3727c5ac, v{tb}", f"v_cvt_pk_bf16_f32 v{tb}, v{tb}, v{tb}", f"v_and_b32 v{tb}, s{sMASK}, v{tb}",
                f"v_sqrt_f32 v{tb}, v{tb}", f"v_lshlrev_b32 v{ta}, 16, v{ta}", f"v_cvt_pk_bf16_f32 v{tb}, v{tb}, v{tb}", f"v_and_b32 v{tb}, s{sMASK}, v{tb}",
                f"v_rcp_f32 v{r}, v{tb}", "s_nop 0", f"v_mul_f32_e64 v{c}, -v{ta}, v{r}"]
    def norm_dword(d, r, c, ta, tb):
        return [f"v_lshlrev_b32 v{ta}, 16, v{d}", f"v_and_b32 v{tb}, s{sMASK}, v{d}", f"v_fma_f32 v{ta}, v{ta}, v{r}, v{c}",
                f"v_fma_f32 v{tb}, v{tb}, v{r}, v{c}", f"v_cvt_pk_bf16_f32 v{d}, v{ta}, v{tb}"]
    H = [W(vm="halo")]
    for i in range(16):
        d = vHRAW + i
        H += [f"v_dot2_f32_bf16 v{hS[i&1]}, v{d}, v{vONE}, {'0' if i < 2 else 'v%d' % hS[i&1]}",
              f"v_dot2_f32_bf16 v{hQ[i&1]}, v{d}, v{d}, {'0' if i < 2 else 'v%d' % hQ[i&1]}"]
    H += ["s_nop 2", f"v_add_f32 v{hS[0]}, v{hS[0]}, v{hS[1]}", f"v_add_f32 v{hQ[0]}, v{hQ[0]}, v{hQ[1]}"]
    for sh in (8, 4, 2, 1):
        H += ["s_nop 0", f"v_add_f32_dpp v{hS[0]}, v{hS[0]}, v{hS[0]} row_ror:{sh} row_mask:0xf bank_mask:0xf",
              f"v_add_f32_dpp v{hQ[0]}, v{hQ[0]}, v{hQ[0]} row_ror:{sh} row_mask:0xf bank_mask:0xf"]
    H = [x for x in H]
    H += ln_scalars(hS[0], hQ[0], hr, hc, t0, t1)
    for i in range(16):
        d = vHRAW + i; ta = t0 + 2 * (i & 1)
        H += [f"v_lshlrev_b32 v{ta}, 16, v{d}", f"v_and_b32 v{ta+1}, s{sMASK}, v{d}",
              f"v_pk_fma_f32 v[{ta}:{ta+1}], v[{ta}:{ta+1}], v[{hr}:{hc}], v[{hr}:{hc}] op_sel:[0,0,1] op_sel_hi:[1,0,1]",
              f"v_cvt_pk_bf16_f32 v{d}, v{ta}, v{ta+1}"]
    def xread(s):
        return [W(vm=("xd", s))] + [("lg", ("xr", 4 * s + jj), f"ds_read_b128 v[{xn(4*s+jj)}:{xn(4*s+jj)+3}], v{vXR[jj]} offset:{7168 + 4096*s}") for jj in range(4)]
    def xstats(s):
        out = []
        for jj in range(4):
            k = 4 * s + jj
            out.append(W(lg=("xr", k)))
            for i in range(4):
                d = xn(k) + i; z = (k == 0 and i < 2)
                out += [f"v_dot2_f32_bf16 v{vS[i&1]}, v{d}, v{vONE}, {'0' if z else 'v%d' % vS[i&1]}",
                        f"v_dot2_f32_bf16 v{vQ[i&1]}, v{d}, v{d}, {'0' if z else 'v%d' % vQ[i&1]}"]
            if k in pureg:
                out += [f"v_lshlrev_b32 v{pureg[k]+i}, 16, v{xn(k)+i}" for i in range(4)]
                out += [f"v_and_b32 v{xn(k)+i}, s{sMASK}, v{xn(k)+i}" for i in range(4)]
        return out
    emit_all(A[:10] + halo_ld)
    g.stamp("dma0")
    emit_all(VD[14:] + A[10:])
    g.stamp("A")
    emit_all(B)
    g.stamp("B")
    assert not (w0 and is_vm(w0[0]) and False)
    w0 = [f"s_add_u32 m0, s{sRB}, 0"] + w0
    clr = [("vm", "clr", f"buffer_store_dwordx4 v[{vZ}:{vZ+3}], v{vZ+4}, {srd(SWS)}, 0 offen sc1")]
    mem = xdma(1) + xdma(2) + xdma(3) + xdma(4) + xdma(5)
    if o["w0_pos"] == 5: mem += w0 + xdma(6) + xdma(7)
    elif o["w0_pos"] == 6: mem += xdma(6) + w0 + xdma(7)
    else: mem += xdma(6) + xdma(7) + w0
    mem += clr
    nb = o["burst"]
    while nb:
        it = mem.pop(0); emit(it); nb -= is_vm(it)
    g.stamp("Bx")
    work = list(H) + xread(0)
    def must(key): return ("fn", lambda: [emit(mem.pop(0)) for _ in range(max([n_ + 1 for n_, it in enumerate(mem) if is_vm(it) and it[1] == key] + [0]))])
    for s in range(8):
        if s + 1 < 8: work += [must(("xd", s + 1))] + xread(s + 1)
        if s == 7:
            work.append(W(lg=("xr", 31)))
            work += [("lg", "hw", f"ds_write_b128 v{vHW[i]}, v[{vHRAW+4*i}:{vHRAW+4*i+3}] offset:35840") for i in range(4)]
        work += xstats(s)
        if s == 1: work.append(("fn", lambda: mem.extend(dma1(1))))
        work.append(("fn", lambda s=s: g.stamp(f"st{s}")))
    weave(work, mem, o["s_ratio"])
    while any(is_vm(m) and m[1] in ("clr", ("w1", 0)) for m in mem): emit(mem.pop(0))
    mem += dma1(2) + dma1(3) + dma1(4)
    g.stamp("x_done")
    e("s_nop 1")
    e(f"v_add_f32 v{vS[0]}, v{vS[0]}, v{vS[1]}"); e(f"v_add_f32 v{vQ[0]}, v{vQ[0]}, v{vQ[1]}")
    e(f"v_mov_b32 v{vS[1]}, v{vS[0]}"); e(f"v_mov_b32 v{vQ[1]}, v{vQ[0]}")
    g.wait(vm=max(ids["clr"], ids[("w1", 0)]), lg=ids["hw"])
    e("s_barrier")
    e(f"v_permlane32_swap_b32 v{vS[0]}, v{vS[1]}"); e(f"v_permlane32_swap_b32 v{vQ[0]}, v{vQ[1]}")

    frags = []
    for m in range(224):
        st, jj, b = m // 28, (m % 28) // 7, m % 7
        base = 7168 * SLOT[st] + (16 * (jj & 1)) * 224 + b * 32
        frags.append(dict(st=st, addr=vT1[jj >> 1], o0=base, o1=base + 4 * 224, kind="p1", k=4 * st + jj, b=b))
    for q in range(4):
        st = 8 + q
        for jj in range(8):
            for b in range(3):
                base = 7168 * SLOT[st] + (16 * (jj & 1)) * 192 + b * 64
                frags.append(dict(st=st, addr=vT2[jj >> 1], o0=base, o1=base + 4 * 192, kind="p2", k=8 * q + jj, b=b))
            if (jj & 1) and not o.get("x_nohalo"):
                base = 7168 * SLOT[st]
                frags.append(dict(st=st, addr=vTH[jj >> 1], o0=base, o1=base + 4 * 192, kind="h", k=4 * q + (jj >> 1), b=0))
    NF = len(frags)
    frd = {}
    hiq = []; loq = []; ldsq = []
    memq = list(mem)
    cur = [0]; done = set(); lastvm = [-9]
    def add_hi(items, deadline):
        n = len(items); t_ = cur[0]
        new = [(t_ + (deadline - t_) * (j + 1) // n, it) for j, it in enumerate(items)]
        merged = []; a = b = 0
        while a < len(hiq) or b < len(new):
            if b >= len(new) or (a < len(hiq) and hiq[a][0] <= new[b][0]): merged.append(hiq[a]); a += 1
            else: merged.append(new[b]); b += 1
        hiq[:] = merged
    UA = [35840, 37888]; UC = [28672, 30720, 32768]; U0 = [0, 2048, 4096]; US = [14336, 16384, 18432]; U1 = [6144 + 2048 * i for i in range(4)]
    unit = {}
    for lst, us in (([0, 1], UA), ([2, 3], UA), ([4, 5, 6], UC), ([7, 8], UA), ([9, 10, 11], US), ([12, 13], UA), ([14, 15, 16], US), ([17, 18, 19], U0),
                    (range(20, 28), UA + US + U0), (range(28, 35), U1 + UC), ([35], UA)):
        for j, ks in enumerate(lst): unit[ks] = us[j]
    def w2reg(ks): return (160 + 8 * ks) if ks < 12 else (96 + 8 * (ks - 12))
    def w2dma(ks_list):
        out = []; i = 0
        while i < len(ks_list):
            ks = ks_list[i]; u = unit[ks]
            pair = (i + 1 < len(ks_list) and ks_list[i+1] == ks + 1 and unit[ks+1] == u + 2048 and (ks & 3) != 3)
            out.append(f"s_add_u32 m0, s{sRB}, {u}")
            if ks < 28:
                sr = SWD
                out += [f"s_lshl_b32 s{sT4}, s{sGK[ks>>2]}, 4", f"s_add_u32 s{sT4}, s{sT4}, s{sW2D}"]
                if ks & 3: out.append(f"s_add_u32 s{sT4}, s{sT4}, {(ks&3)*16384}")
            else:
                sr = SWO
                out.append(f"s_add_u32 s{sT4}, s{sW2O}, {(ks-28)*16384}")
            for j in range(4 if pair else 2):
                out.append(("vm", ("w2", ks + (j >> 1)), f"buffer_load_dwordx4 v{vDW[j]}, {srd(sr)}, s{sT4} offen offset:{1024*j} lds"))
            i += 2 if pair else 1
        return out
    def need(key):
        def f():
            while any(is_vm(it) and it[1] == key for it in memq): emit(memq.pop(0))
            g.wait(vm=ids[key])
        return ("fn", lambda: f())
    def w2toreg(ks):
        out = [need(("w2", ks))]
        for nb in range(2):
            r = w2reg(ks) + 4 * nb
            for sec in range(2):
                out.append(("lg", ("w2r", ks), f"ds_read_b64_tr_b16 a[{r+2*sec}:{r+2*sec+1}], v{vTW[nb]} offset:{unit[ks] + 1024*sec}"))
        return out
    def stage_w2(rd_list, next_list):
        for ks in rd_list: ldsq.extend(w2toreg(ks))
        def refill():
            memq.append(W(lg=("w2r", rd_list[-1]))); memq.extend(w2dma(next_list))
        ldsq.append(("fn", refill))
    sXR = sXO[0]; vRD = 17; RU = [20480, 34816]
    res_setup = [f"s_lshl_b32 s{sXR}, s{sM2}, 16", f"s_lshr_b32 s{sT0}, s{sW}, 1", f"s_lshl_b32 s{sT0}, s{sT0}, 15", f"s_add_u32 s{sXR}, s{sXR}, s{sT0}",
                 f"s_lshl_b32 s{sT0}, s{sNT}, 7", f"s_add_u32 s{sXR}, s{sXR}, s{sT0}", f"s_and_b32 s{sT0}, s{sW}, 1", f"s_lshl_b32 s{sT0}, s{sT0}, 6", f"s_add_u32 s{sXR}, s{sXR}, s{sT0}",
                 f"v_lshrrev_b32 v16, 2, v{lane}", f"v_lshlrev_b32 v16, 10, v16", f"v_lshrrev_b32 v{vRD}, 4, v{lane}", f"v_xor_b32 v{vRD}, v{vRD}, v{lane}",
                 f"v_and_b32 v{vRD}, 3, v{vRD}", f"v_lshl_add_u32 v{vRD}, v{vRD}, 4, v16"]
    resid = [f"s_add_u32 m0, s{sRB}, {RU[0]}", ("vm", "res", f"buffer_load_dwordx4 v{vRD}, {srd(SX)}, s{sXR} offen lds"),
             f"s_add_u32 m0, s{sRB}, {RU[1]}", f"s_add_u32 s{sT4}, s{sXR}, 16384", ("vm", "res", f"buffer_load_dwordx4 v{vRD}, {srd(SX)}, s{sT4} offen lds")]
    def on_barrier(s):
        if s == 3: add_hi(res_setup, 28 * 6)
        nxt = {1: 5, 2: 6, 3: 7, 4: 8, 6: 9, 7: 10}.get(s)
        if nxt is not None: push_front(memq, dma1(nxt) if nxt < 8 else dma2(nxt), after_w1=True)
        if s == 0:
            for j in range(16):
                ldsq.append(("lg", ("hx", j), f"ds_read_b128 a[{HX+4*j}:{HX+4*j+3}], v{vHR[j&1]} offset:{35840 + 128*(j>>1)}"))
            ldsq.append(("fn", lambda: done.add("hx")))
        if s == 2:
            assert "hx" in done and g.lg_done > ids[("hx", 15)]
            memq.extend(w2dma([0, 1]))
            memq.append(("vm", "dbgchk", f"buffer_load_dword v{vCK}, off, {srd(SDBG)}, s{sT5} sc1"))
        if s == 4: stage_w2([0, 1], [2, 3])
        if s == 5:
            memq.extend(w2dma([4, 5, 6]))
            def chk():
                g.wait(vm=ids["dbgchk"])
                e(f"v_readfirstlane_b32 s{sT0}, v{vCK}")
                e(f"s_cmp_lg_u32 s{sT0}, 0")
                e("s_cbranch_scc0 L_dbgspin")
                g.label("L_dbgok")
            add_hi([("fn", chk)], 28 * 7)
        if s == 6: stage_w2([2, 3], [7, 8])
        if s == 7:
            for ks in (4, 5, 6): ldsq.extend(w2toreg(ks))
            def refill():
                push_front(memq, [W(lg=("w2r", 6))] + dma2(11), after_w1=True); done.add("q11")
            ldsq.append(("fn", refill))
        if s == 8:
            memq.extend(w2dma([9, 10, 11]))
            stage_w2([7, 8], [12, 13])
        if s == 9: memq.extend(resid)
        if s == 10:
            memq.extend(w2dma([17, 18, 19]))
            stage_w2([9, 10, 11], [14, 15, 16])
    def issue_frag(i):
        f = frags[i]; n = 0
        if i > 0 and frags[i - 1]["st"] != f["st"]:
            assert not any(is_vm(it) and it[1] == ("w1", f["st"]) for it in memq), f["st"]
            g.stamp(f"preB{f['st']-1}")
            if not o.get("x_novmw"): n += g.wait(vm=ids[("w1", f["st"])])
            if not o.get("x_nobar"): e("s_barrier"); n += 1
            g.stamp(f"B{f['st']-1}")
            on_barrier(f["st"] - 1)
        r = FR + 4 * (i % 8)
        if not o.get("x_1tr"): g.lg(f"ds_read_b64_tr_b16 a[{r}:{r+1}], v{f['addr']} offset:{f['o0']}")
        frd[i] = g.lg(f"ds_read_b64_tr_b16 a[{r+2}:{r+3}], v{f['addr']} offset:{f['o1']}")
        return n + 2
    def ln_items(k):
        out = []
        if k in pureg:
            for i in range(4):
                lo, d = pureg[k] + i, xn(k) + i
                out += [f"v_fma_f32 v{lo}, v{lo}, v{vR}, v{vC}", f"v_fma_f32 v{d}, v{d}, v{vR}, v{vC}"]
            out += [f"v_cvt_pk_bf16_f32 v{xn(k)+i}, v{pureg[k]+i}, v{xn(k)+i}" for i in range(4)]
        else:
            for i in range(4): out += norm_dword(xn(k) + i, vR, vC, vTmp[2 * (i & 1)], vTmp[2 * (i & 1) + 1])
        return out
    for i in range(D): issue_frag(i)
    e(f"v_add_f32 v{vS[0]}, v{vS[0]}, v{vS[1]}"); e(f"v_add_f32 v{vQ[0]}, v{vQ[0]}, v{vQ[1]}")
    emit_all(ln_scalars(vS[0], vQ[0], vR, vC, t0, t1))
    emit_all(ln_items(0))
    if o["touch"]:
        memq.append(("vm", "touch", f"buffer_load_dword v{vTouch}, v{vTouch}, {srd(SWO)}, 0 offen"))
        memq.append(("vm", "touch", f"buffer_load_dword v{vTouch-1}, v{vTouch-1}, {srd(SWD)}, 0 offen"))
    memq.append(("vm", "sig", f"buffer_store_dword v{vCK}, v{vSg}, {srd(SDBG)}, 0 offen sc1"))
    e("s_nop 0")
    g.stamp("mfma_start")
    for k in range(1, 32):
        its_ = ln_items(k)
        if o.get("x_noln"): continue
        for j_, x in enumerate(its_): hiq.append((7 * (k - 1) + (6 * (j_ + 1) - 1) // len(its_), x))

    stq = []
    def epi_items(b):
        t, r = acc1(b); out = []
        P = r + 8
        if t == "a":
            base = ACCV + 16 * ((b - 3) % 3)
            ut = base + 12 if b < 6 else ACCV + 16
            out += [f"v_accvgpr_read_b32 v{base+i}, a{r+i}" for i in range(8)]
            out += [f"v_max_f32 v{base+i}, 0, v{base+i}" for i in range(8)]
            for hh in range(2):
                out += [f"v_accvgpr_read_b32 v{ut+i}, a{r+8+4*hh+i}" for i in range(4)]
                out += [f"v_mul_f32 v{base+4*hh+i}, v{base+4*hh+i}, v{ut+i}" for i in range(4)]
            P = base + 12 if b < 6 else base
            r = base
        else:
            out += [f"v_max_f32 v{r+i}, 0, v{r+i}" for i in range(8)]
            out += [f"v_mul_f32 v{r+i}, v{r+i}, v{r+8+i}" for i in range(8)]
        out += [f"v_cvt_pk_bf16_f32 v{P+i}, v{r+2*i}, v{r+2*i+1}" for i in range(4)]
        if o.get("x_noepi"): out = out[-4:]
        st = ([f"s_add_u32 s{sHST}, s{sHST}, 4096"] if b == 4 else []) + \
             [("vm", ("hst", b), f"buffer_store_dwordx4 v[{P}:{P+3}], v{vL16}, {srd(SWS)}, s{sHST} offen offset:{(b&3)*1024} {'' if o.get('x_plainst') else 'sc1'}")]
        out.append(("fn", lambda: stq.extend(st)))
        return out
    def chkdone(key): assert key in ids, key
    flag_items = [f"v_mov_b32 v{vR}, 1"]
    vOne = vR
    def hflag():
        g.wait(vm=ids[("hst", 6)])
        g.vm(f"buffer_store_dword v{vOne}, v{vFl}, {srd(SWS)}, 0 offen sc1")
        g.stamp("hflag"); done.add("hflag")
    QA = PUB
    for i in range(NF):
        f = frags[i]
        used = 2; cur[0] = i
        if i % WB == 0: used += g.wait(lg=frd[min(i + WB - 1, NF - 1)])
        else: used += g.wait(lg=frd[i])
        fr = f"a[{FR + 4*(i%8)}:{FR + 4*(i%8) + 3}]"
        if f["kind"] == "p1":
            t, r = acc1(f["b"]); dst = rr(t, r, 16)
            e(f"v_mfma_f32_32x32x16_bf16 {dst}, {fr}, v[{xn(f['k'])}:{xn(f['k'])+3}], {dst if f['k'] else '0'}")
            cap = 8
        elif f["kind"] == "p2":
            dst = rr("v", QA + 16 * f["b"], 16)
            e(f"v_mfma_f32_32x32x16_bf16 {dst}, {fr}, v[{xn(f['k'])}:{xn(f['k'])+3}], {dst if f['k'] else '0'}")
            cap = 8
        else:
            dst = rr("v", vHA, 4)
            e(f"v_mfma_f32_16x16x32_bf16 {dst}, {fr}, a[{HX+4*f['k']}:{HX+4*f['k']+3}], {dst if f['k'] else '0'}")
            cap = 4
        if i + D < NF: used += issue_frag(i + D)
        if i == 224 + 2:
            for b in range(7): loq.extend(epi_items(b))
            loq.extend(flag_items)
        if i == 223: g.stamp("pass1_end")
        if ("hst", 6) in ids and "hst_gap" not in ids: ids["hst_gap"] = i; g.stamp("hst")
        if "hst_gap" in ids and "hflag" not in done and not loq and i >= ids["hst_gap"] + o["hflag_delay"]: hflag(); used += 2
        if stq and not any(is_vm(it) and it[1] in (("w1", 10), ("w1", 11))[:2 - o["st_early"]] for it in memq) and ("q11" in done or o["st_early"]):
            j_ = max([n_ + 1 for n_, it in enumerate(memq) if is_vm(it) and it[1][0] == "hst"] + [0])
            memq[j_:j_] = stq; stq[:] = []
        epi_first = (i >= 224 and (loq or stq))
        if ldsq and used < cap and (not epi_first or "q11" not in done):
            while ldsq and ldsq[0][0] == "fn": emit(ldsq.pop(0))
            if ldsq and (g.lg_n - g.lg_done) < 15:
                emit(ldsq.pop(0)); used += 1
            while ldsq and ldsq[0][0] == "fn" and ldsq[0][1].__name__ != "<lambda>": emit(ldsq.pop(0))
        late = sum(1 for d_, _ in hiq[:8] if d_ <= i)
        urgent = any(is_vm(it) and it[1][0] in ("w1", "hst") for it in memq)
        while memq and used + late < cap and (urgent or not epi_first):
            it = memq[0]
            if is_vm(it):
                if used + late + o["dmacost"] > cap + 1 or i < lastvm[0] + (o["dma_gap"] if i < 217 else o["dma_gap2"]): break
                memq.pop(0); emit(it); used += o["dmacost"]; lastvm[0] = i; break
            memq.pop(0); n0 = len(g.L); emit(it); used += len(g.L) - n0
        while hiq and (used < cap or hiq[0][0] <= i):
            it = hiq.pop(0)[1]; n0 = len(g.L); emit(it); used += len(g.L) - n0
        while loq and used < cap + (o["epi_over"] if cap == 8 else 0):
            it = loq.pop(0); n0 = len(g.L); emit(it); used += len(g.L) - n0
    assert not hiq
    emit_all(loq); loq[:] = []
    assert not stq
    while ldsq: emit(ldsq.pop(0))
    g.stamp("pass2_end")

    Q, K, V = QA, QA + 16, QA + 32
    KVO = 21504
    a0, a1, a2, a3 = 1, 2, 3, 4
    vKW, vVW, vVW2, vKR, vVR, vVR2, vHWa = 5, 6, 7, 8, 9, 11, 24
    vXo = 16; vPd = 22
    hpoll = [("vm", "hp", f"buffer_load_dword v{vPd}, v{vPo}, {srd(SWS)}, 0 offen sc1")]
    if o["hp_issue"] == -1: emit_all(hpoll)
    P = []
    for ks in range(12, 20): P += w2toreg(ks)
    P += [("fn", lambda: (memq.append(W(lg=("w2r", 19))), memq.extend(w2dma(list(range(20, 28))))))]
    P += [f"v_and_b32 v{a0}, 31, v{lane}", f"v_lshrrev_b32 v{a1}, 5, v{lane}",
          f"s_lshl_b32 s{sT0}, s{sW}, 5", f"v_add_u32 v{a2}, s{sT0}, v{a0}", f"v_lshlrev_b32 v{a2}, 4, v{a2}",
          f"v_mul_u32_u24 v{a3}, 40960, v{a1}", f"v_add_u32 v{a3}, v{a3}, v{a2}", f"v_add_u32 v{vVW}, {KVO + 256}, v{a3}", f"v_add_u32 v{vVW2}, {RBc(2)}, v{vVW}",
          f"v_mul_u32_u24 v{a3}, {RBc(2)}, v{a1}", f"v_add_u32 v{a3}, v{a3}, v{a2}", f"v_add_u32 v{vKW}, {KVO + 4608 + 256}, v{a3}", f"v_add_u32 v{vKR}, {KVO + 4608 + 32}, v{a3}",
          f"v_mul_u32_u24 v{a3}, 2304, v{a1}", f"v_add_u32 v{a3}, v{a3}, v{a2}", f"v_add_u32 v{vVR}, {KVO + 32}, v{a3}", f"v_add_u32 v{vVR2}, {RBc(2)}, v{vVR}"]
    P += [f"v_cvt_pk_bf16_f32 v{K+j}, v{K+2*j}, v{K+2*j+1}" for j in range(8)]
    for j, (rg, off) in enumerate([(vVW, 0), (vVW2, 0), (vVW, 2304), (vVW2, 2304)]):
        P.append(("lg", "vw", f"ds_write_b128 v{rg}, v[{V+4*j}:{V+4*j+3}] offset:{off}"))
    P += [f"v_permlane32_swap_b32 v{K+j}, v{K+4+j}" for j in range(4)]
    P += [f"v_and_b32 v{a0}, 15, v{lane}", f"v_lshlrev_b32 v{a0}, 4, v{a0}", f"v_lshrrev_b32 v{a1}, 4, v{lane}"]
    P += [("lg", "kw", f"ds_write_b128 v{vKW}, v[{K}:{K+3}]"), ("lg", "kw", f"ds_write_b128 v{vKW}, v[{K+4}:{K+7}] offset:40960")]
    weave(P, memq, o["att_ratio"])
    g.wait(lg=g.lg_n - 8)
    e(f"s_cmp_ge_u32 s{sW}, 2"); e("s_cbranch_scc1 L_halo_v")
    e(f"v_and_b32 v{a2}, 1, v{a1}"); e(f"v_mul_u32_u24 v{a2}, 40960, v{a2}"); e(f"v_lshrrev_b32 v{a1}, 1, v{a1}"); e(f"v_lshl_add_u32 v{a2}, v{a1}, 3, v{a2}")
    e(f"s_mul_i32 s{sT0}, s{sW}, {RBc(2)}"); e(f"v_add3_u32 v{vHWa}, v{a2}, v{a0}, s{sT0}")
    e(f"v_cvt_pk_bf16_f32 v{vHA}, v{vHA}, v{vHA+1}"); e(f"v_cvt_pk_bf16_f32 v{vHA+1}, v{vHA+2}, v{vHA+3}")
    e(f"ds_write_b64 v{vHWa}, v[{vHA}:{vHA+1}] offset:{KVO + 4608}")
    e("s_branch L_halo_done")
    g.label("L_halo_v")
    e(f"v_mul_u32_u24 v{a2}, 40960, v{a1}"); e(f"v_lshrrev_b32 v{a1}, 1, v{a1}"); e(f"v_lshl_add_u32 v{a2}, v{a1}, 7, v{a2}")
    e(f"s_and_b32 s{sT0}, s{sW}, 1"); e(f"s_mul_i32 s{sT0}, s{sT0}, 2304"); e(f"v_add3_u32 v{vHWa}, v{a2}, v{a0}, s{sT0}")
    g.lg(f"ds_write_b128 v{vHWa}, v[{vHA}:{vHA+3}] offset:{KVO}")
    g.label("L_halo_done")
    P = [f"v_cvt_pk_bf16_f32 v{Q+j}, v{Q+2*j}, v{Q+2*j+1}" for j in range(8)]
    P += ["s_nop 0"]
    P += [f"v_permlane32_swap_b32 v{Q+j}, v{Q+4+j}" for j in range(4)]
    weave(P, memq, o["att_ratio"])
    if "hflag" not in done:
        while any(is_vm(it) and it[1][0] == "hst" for it in memq): emit(memq.pop(0))
        hflag()
    g.wait_all_lg()
    e("s_barrier")
    g.stamp("attn_bar")
    KB = 128; VB = 192
    AT = []
    for w in range(8):
        for p in range(2):
            AT.append(("lg", ("kr", w), f"ds_read_b128 v[{KB+8*w+4*p}:{KB+8*w+4*p+3}], v{vKR} offset:{(14-2*w)*16 + 40960*p}"))
    LG = 32
    def vread(w):
        return [("lg", ("vr", w), f"ds_read_b128 v[{VB+16*(w&3)+4*dq}:{VB+16*(w&3)+4*dq+3}], v{vVR if dq < 2 else vVR2} offset:{(14-2*w)*16 + 40960*(dq&1)}") for dq in range(4)]
    QK = []
    for w2 in range(0, 8, 2):
        QK.append(W(lg=("kr", w2 + 1)))
        for j in range(8):
            for w in (w2, w2 + 1):
                QK.append(f"v_dot2_f32_bf16 v{LG+w}, v{Q+j}, v{KB+8*w+j}, {'0' if j == 0 else 'v%d' % (LG+w)}")
    for w in range(3): QK += vread(w)
    SMX = [f"s_lshl_b32 s{sT0}, s{sMT}, 7", f"s_lshl_b32 s{sT1}, s{sW}, 5", f"s_add_u32 s{sT0}, s{sT0}, s{sT1}",
           f"v_and_b32 v{a0}, 31, v{lane}", f"v_add_u32 v{a0}, s{sT0}, v{a0}", f"v_mov_b32 v{a1}, 0xcf6e6b28"]
    sMK = [None] + [f"s[{38+2*j}:{39+2*j}]" for j in range(1, 7)] + ["vcc"]
    SMX += [f"v_cmp_le_u32 {sMK[w]}, {2*w}, v{a0}" for w in range(7, 0, -1)]
    SMX += [f"v_cndmask_b32 v{LG+w}, v{a1}, v{LG+w}, {sMK[w]}" for w in range(7, 0, -1)]
    SMX += [f"v_max3_f32 v{a2}, v{LG}, v{LG+1}, v{LG+2}", f"v_max3_f32 v{a3}, v{LG+3}, v{LG+4}, v{LG+5}",
            f"v_max3_f32 v{a2}, v{a2}, v{LG+6}, v{LG+7}", f"s_mov_b32 s{sT0}, 0x3eb8aa3b", f"v_max_f32 v{a2}, v{a2}, v{a3}"]
    SMX += [f"v_sub_f32 v{LG+w}, v{LG+w}, v{a2}" for w in range(8)]
    SMX += [f"v_mul_f32 v{LG+w}, s{sT0}, v{LG+w}" for w in range(8)]
    SMX += [f"v_exp_f32 v{LG+w}, v{LG+w}" for w in range(8)]
    SMX += vread(3)
    SM = 40
    SMX += [f"v_pk_add_f32 v[{SM}:{SM+1}], v[{LG}:{LG+1}], v[{LG+2}:{LG+3}]", f"v_pk_add_f32 v[{SM+2}:{SM+3}], v[{LG+4}:{LG+5}], v[{LG+6}:{LG+7}]",
            f"v_pk_add_f32 v[{SM}:{SM+1}], v[{SM}:{SM+1}], v[{SM+2}:{SM+3}]", f"v_add_f32 v{SM}, v{SM}, v{SM+1}", f"v_rcp_f32 v{SM}, v{SM}", "s_nop 0"]
    SMX += [f"v_pk_mul_f32 v[{LG+2*j}:{LG+2*j+1}], v[{LG+2*j}:{LG+2*j+1}], v[{SM}:{SM+1}] op_sel_hi:[1,0]" for j in range(4)]
    O = 48
    AV = []
    for w in range(8):
        AV.append(W(lg=("vr", w)))
        pw = LG + (w & ~1); sel = w & 1
        for j in range(8):
            r = VB + 16 * (w & 3) + 2 * j
            if w == 0: AV.append(f"v_pk_mul_f32 v[{O+2*j}:{O+2*j+1}], v[{r}:{r+1}], v[{pw}:{pw+1}] op_sel:[0,{sel}] op_sel_hi:[1,{sel}]")
            else: AV.append(f"v_pk_fma_f32 v[{O+2*j}:{O+2*j+1}], v[{r}:{r+1}], v[{pw}:{pw+1}], v[{O+2*j}:{O+2*j+1}] op_sel:[0,{sel},0] op_sel_hi:[1,{sel},1]")
        if w + 4 < 8: AV += vread(w + 4)
    OP = 64
    dst = {0: 0, 1: 1, 4: 2, 5: 3, 2: 4, 3: 5, 6: 6, 7: 7}
    AV += [f"v_cvt_pk_bf16_f32 v{OP+dst[p]}, v{O+2*p}, v{O+2*p+1}" for p in range(8)]
    AV += [f"s_lshl_b32 s{sT0}, s{sSL}, 11", f"s_add_u32 s{sT0}, s{sT0}, s{sTb}"]
    AV += [f"v_permlane32_swap_b32 v{OP+j}, v{OP+4+j}" for j in range(4)]
    def hreg(n): return ("a", 4 * n) if n < 16 else ("v", 96 + 4 * (n - 16)) if n < 56 else ("a", 4 * (n - 56))
    sHA, sHB = sXO[1], sXO[2]
    def hload(ks):
        out = []
        if ks < 28:
            if ks % 4 == 0: out += [f"s_add_u32 s{sHA}, s{sH0}, s{sGK[ks>>2]}", f"s_add_u32 s{sHB}, s{sH1}, s{sGK[ks>>2]}"]
            so = (sHA, sHB)
        else:
            if ks == 32: out += [f"s_add_u32 s{sO0}, s{sO0}, 4096", f"s_add_u32 s{sO1}, s{sO1}, 4096"]
            so = (sO0, sO1)
        for i in range(2):
            t, r = hreg(2 * ks + i)
            out.append(("vm", ("h", 2 * ks + i), f"buffer_load_dwordx4 {t}[{r}:{r+3}], v{vL16}, {srd(SWS)}, s{so[i]} offen offset:{(ks&3)*1024} sc1"))
        return out
    def hcheck():
        while any(is_vm(it) and it[1] == "hp" for it in memq): emit(memq.pop(0))
        g.wait(vm=ids["hp"])
        e(f"v_cmp_ne_u32 vcc, 1, v{vPd}"); e("s_nop 4"); e("s_cbranch_vccnz L_hspin")
        g.label("L_hok")
        g.stamp("hpoll_ok")
        hl = []
        for ks in range(8): hl += hload(ks)
        memq[0:0] = hl
    R_ = o["att_ratio"]
    memq.extend(w2dma(list(range(28, 35))))
    if o["hp_issue"] == 0: memq[0:0] = hpoll
    weave(AT, memq, R_)
    if o["hp_check"] == 0: hcheck()
    if o["hp_issue"] == 1: memq[0:0] = hpoll
    weave(QK, memq, R_)
    if o["hp_issue"] == 2: memq[0:0] = hpoll
    if o["hp_check"] == 1: hcheck()
    weave(SMX, memq, R_)
    if o["hp_check"] == 2: hcheck()
    weave(AV, memq, R_)
    g.vm(f"buffer_store_dwordx4 v[{OP}:{OP+3}], v{vL16}, {srd(SWS)}, s{sT0} offen sc1")
    ids["ost"] = g.vm(f"buffer_store_dwordx4 v[{OP+4}:{OP+7}], v{vL16}, {srd(SWS)}, s{sT0} offen offset:1024 sc1")
    g.stamp("attn_end")
    if o["hp_check"] == 3: hcheck()
    ACC = 32; XR = 72
    e(f"v_and_b32 v{a0}, 15, v{lane}"); e(f"v_lshlrev_b32 v{a0}, 6, v{a0}"); e(f"v_bfe_u32 v{a1}, v{lane}, 4, 1"); e(f"v_mul_u32_u24 v{a1}, {RU[1]-RU[0]}, v{a1}")
    e(f"v_add3_u32 v{a0}, v{a0}, v{a1}, s{sRB}"); e(f"v_lshrrev_b32 v{a1}, 5, v{lane}"); e(f"v_lshl_add_u32 v{a0}, v{a1}, 3, v{a0}")
    e(f"v_bfe_u32 v{a1}, v{lane}, 2, 2"); e(f"v_lshl_add_u32 v{a0}, v{a1}, 4, v{a0}")
    for q in range(1, 4): e(f"v_xor_b32 v{a0+q}, {16*q}, v{a0}")
    assert not any(is_vm(it) and it[1] == "res" for it in memq)
    g.wait(vm=ids["res"])
    for q in range(4): ids["resr"] = g.lg(f"ds_read_b64 v[{XR+2*q}:{XR+2*q+1}], v{a0+q} offset:{RU[0]}")
    while any(is_vm(it) and it[1][0] == "h" for it in memq): emit(memq.pop(0))
    g.wait(lg=ids["resr"])
    for q in range(4):
        for h in range(2):
            e(f"v_lshlrev_b32 v{ACC+4*q+2*h}, 16, v{XR+2*q+h}"); e(f"v_and_b32 v{ACC+4*q+2*h+1}, s{sMASK}, v{XR+2*q+h}")
    e("s_nop 1")
    g.stamp("p2_start")
    FR2 = 64
    def w2frag(ks):
        if ks < 20: return
        emit(need(("w2", ks)))
        for nb in range(2):
            r = FR2 + 8 * (ks % 4) + 4 * nb
            for sec in range(2):
                ids[("w2l", ks)] = g.lg(f"ds_read_b64_tr_b16 a[{r+2*sec}:{r+2*sec+1}], v{vTW[nb]} offset:{unit[ks] + 1024*sec}")
    vRW = 1; vRR = [2, 3, 4]
    fin = [f"v_add_u32 v{vRW}, s{sRB}, v{vL16}"]
    for s in range(1, 4):
        fin += [f"s_xor_b32 s{sT0}, s{sW}, {s}", f"s_mul_i32 s{sT1}, s{sT0}, 40960", f"s_lshr_b32 s{sT0}, s{sT0}, 1", f"s_lshl_b32 s{sT0}, s{sT0}, 7",
                f"s_add_u32 s{sT0}, s{sT0}, s{sT1}", f"v_add_u32 v{vRR[s-1]}, s{sT0}, v{vL16}"]
    fin += [f"v_and_b32 v5, 31, v{lane}", "v_lshlrev_b32 v5, 10, v5", f"v_lshrrev_b32 v6, 5, v{lane}", f"v_lshl_add_u32 v{vXo}, v6, 4, v5"]
    Lk = o["L"]; nxt = 8; oflag = False
    pend = []
    def one_vm(q):
        while q:
            it = q.pop(0); emit(it)
            if is_vm(it): return True
        return False
    for ks in range(36):
        if ks == o["op_check"]:
            while any(is_vm(it) and it[1] == "op" for it in pend): emit(pend.pop(0))
            g.wait(vm=ids["op"])
            e(f"v_cmp_ne_u32 vcc, 1, v{vPd}"); e("s_nop 4"); e("s_cbranch_vccnz L_ospin")
            g.label("L_ook")
            g.stamp("opoll_ok")
        while nxt < 36 and nxt <= ks + Lk and (nxt < 28 or ks >= o["op_check"]):
            assert nxt < 28 or nxt - 28 < ks
            pend += hload(nxt); nxt += 1
        if ks == o["op_issue"]:
            pend.append(("vm", "op", f"buffer_load_dword v{vPd}, v{vPo}, {srd(SWS)}, 0 offen offset:128 sc1"))
        if ks == 21: memq.extend(w2dma([35]))
        while any(is_vm(it) and it[1] == ("h", 2 * ks + 1) for it in pend): emit(pend.pop(0))
        g.wait(vm=ids[("h", 2 * ks + 1)], lg=ids.get(("w2l", ks)))
        if not oflag and g.vm_done > ids["ost"]:
            pend.insert(0, ("vm", "of", f"buffer_store_dword v{vOne}, v{vFl}, {srd(SWS)}, 0 offen offset:128 sc1")); oflag = True
            g.stamp("oflag")
        g.stamp(f"k{ks}")
        order = [(0, 0), (0, 1), (1, 0), (1, 1)] if ks < 35 else [(0, 1), (1, 0), (1, 1), (0, 0)]
        for n_, (i, j) in enumerate(order):
            t, r = hreg(2 * ks + i)
            wr = (w2reg(ks) + 4 * j) if ks < 20 else (FR2 + 8 * (ks % 4) + 4 * j)
            d = f"v[{ACC+32*i+16*j}:{ACC+32*i+16*j+15}]"
            e(f"v_mfma_f32_32x32x16_bf16 {d}, a[{wr}:{wr+3}], {t}[{r}:{r+3}], {d if (ks or (i == 0 and j == 0)) else '0'}")
            if n_ == 0 and ks + 2 < 36: w2frag(ks + 2)
            if n_ in (1, 3): one_vm(pend) or one_vm(memq)
            elif n_ == 2: one_vm(memq) or one_vm(pend)
            elif ks + 2 < 20 or ks + 2 >= 36: one_vm(pend)
            if ks >= 24:
                for _ in range(3):
                    if fin: e(fin.pop(0))
    assert not pend and not memq
    assert oflag and not fin and o["op_issue"] < o["op_check"]
    g.stamp("p2_end")
    e("s_nop 8")
    for s in range(1, 4):
        for q in range(4):
            g.lg(f"ds_write_b128 v{vRW}, v[{ACC+16*s+4*q}:{ACC+16*s+4*q+3}] offset:{4096*s + 1024*q}")
    g.wait_all_lg()
    e("s_barrier")
    RD = 96
    for s in range(1, 4):
        for q in range(4):
            ids[("rr", s, q)] = g.lg(f"ds_read_b128 v[{RD+16*(s-1)+4*q}:{RD+16*(s-1)+4*q+3}], v{vRR[s-1]} offset:{4096*s + 1024*q}")
    for s in range(1, 4):
        for q in range(4):
            g.wait(lg=ids[("rr", s, q)])
            for h in range(2):
                a = ACC + 4 * q + 2 * h; b = RD + 16 * (s - 1) + 4 * q + 2 * h
                e(f"v_pk_add_f32 v[{a}:{a+1}], v[{a}:{a+1}], v[{b}:{b+1}]")
    PK = 48
    for j in range(8): e(f"v_cvt_pk_bf16_f32 v{PK+j}, v{ACC+2*j}, v{ACC+2*j+1}")
    e("s_nop 0")
    for p in range(2):
        e(f"v_permlane32_swap_b32 v{PK+4*p}, v{PK+4*p+2}"); e(f"v_permlane32_swap_b32 v{PK+4*p+1}, v{PK+4*p+3}")
    for p in range(2):
        g.vm(f"buffer_store_dwordx4 v[{PK+4*p}:{PK+4*p+3}], v{vXo}, {srd(SOUT)}, s{sXR} offen offset:{32*p}")
    if diag:
        g.stamp("end")
        e("s_memrealtime s[70:71]")
        e("s_waitcnt lgkmcnt(0) vmcnt(0)")
        e(f"s_lshl_b32 s{sT0}, s{sM2}, 3"); e(f"s_add_u32 s{sT0}, s{sT0}, s{sNT}"); e(f"s_lshl_b32 s{sT0}, s{sT0}, 2"); e(f"s_add_u32 s{sT0}, s{sT0}, s{sW}"); e(f"s_lshl_b32 s{sT0}, s{sT0}, 6"); e(f"s_add_u32 s{sT0}, s{sT0}, {0xB00000}")
        e(f"s_mov_b32 s{SWS+2}, 0x1000000")
        if o.get("dbgrep"):
            e(f"s_lshl_b32 s{sT1}, s{sM2}, 3"); e(f"s_add_u32 s{sT1}, s{sT1}, s{sNT}"); e(f"s_lshl_b32 s{sT1}, s{sT1}, 2"); e(f"s_add_u32 s{sT1}, s{sT1}, s{sW}")
            e(f"s_mov_b32 s{sT2}, 0x1000")
            for n_, wid in enumerate((0, 133 * 4, 255 * 4)):
                e(f"s_cmp_eq_u32 s{sT1}, {wid}"); e(f"s_cselect_b32 s{sT2}, {20*n_}, s{sT2}")
            e("s_sub_u32 s70, s70, s101")
            for i in range(1, 5):
                e(f"s_sub_u32 s{sT1}, s{ST0+2*i}, s{ST0}"); e(f"v_mov_b32 v1, s{sT1}"); e(f"v_mov_b32 v2, s{sT2}")
                e(f"buffer_store_dword v1, v2, {srd(SDBG)}, 0 offen offset:{4*(i-1)}")
            e(f"v_mov_b32 v1, s70"); e(f"buffer_store_dword v1, v2, {srd(SDBG)}, 0 offen offset:16")
            e("s_waitcnt vmcnt(0)"); e("s_endpgm")
        for i, r in [(i, ST0 + 2 * i) for i in range(len(g.stamp_names))] + [(13, 100), (14, 101), (15, 70)]:
            e(f"v_mov_b32 v1, s{r}"); e(f"v_mov_b32 v2, {4*i}")
            e(f"buffer_store_dword v1, v2, {srd(SWS)}, s{sT0} offen")
        e("s_waitcnt vmcnt(0)")
    g.label("L_end")
    e("s_endpgm")
    g.label("L_dbgspin")
    e(f"s_add_u32 s{sSPIN}, s{sSPIN}, 1"); e(f"s_cmp_gt_u32 s{sSPIN}, {SPIN_MAX}"); e("s_cbranch_scc1 L_dbgok")
    e("s_sleep 2")
    e(f"buffer_load_dword v{vCK}, off, {srd(SDBG)}, s{sT5} sc1")
    e("s_waitcnt vmcnt(0)")
    e(f"v_readfirstlane_b32 s{sT0}, v{vCK}")
    e(f"s_cmp_lg_u32 s{sT0}, 0")
    e("s_cbranch_scc0 L_dbgspin")
    e("s_branch L_dbgok")
    for nm, off, back in (("L_hspin", 0, "L_hok"), ("L_ospin", 128, "L_ook")):
        g.label(nm)
        e(f"s_add_u32 s{sSPIN}, s{sSPIN}, 1"); e(f"s_cmp_gt_u32 s{sSPIN}, {SPIN_MAX}"); e(f"s_cbranch_scc1 {back}")
        e(f"buffer_load_dword v{vPd}, v{vPo}, {srd(SWS)}, 0 offen offset:{off} sc1")
        e("s_waitcnt vmcnt(0)")
        e(f"v_cmp_ne_u32 vcc, 1, v{vPd}"); e("s_nop 4")
        e(f"s_cbranch_vccnz {nm}")
        e(f"s_branch {back}")
    g.label("L_codeend")
    hdr = open("cdna_kernels/" + NAME + ".s.ref").read().split("; Override")[0]
    txt = hdr + "; @launch grid=(256,1,1) block=(256,1,1) lds=163840\n"
    txt += f""".amdgcn_target "amdgcn-amd-amdhsa--gfx950"
.text
.globl {NAME}_kernel
.p2align 8
.type {NAME}_kernel,@function
{NAME}_kernel:
""" + "\n".join(g.L) + f"""
.section .rodata,"a"
.p2align 6
.amdhsa_kernel {NAME}_kernel
  .amdhsa_next_free_vgpr 512
  .amdhsa_next_free_sgpr 102
  .amdhsa_accum_offset 256
  .amdhsa_group_segment_fixed_size 0
  .amdhsa_kernarg_size 80
  .amdhsa_user_sgpr_count 2
  .amdhsa_user_sgpr_kernarg_segment_ptr 1
  .amdhsa_system_sgpr_workgroup_id_x 1
.end_amdhsa_kernel
"""
    return txt, g.stamp_names

if __name__ == "__main__":
    import json
    diag = "--diag" in sys.argv
    args = [a for a in sys.argv[1:] if not a.startswith("--")]
    opt = json.loads(args[1]) if len(args) > 1 else None
    txt, names = gen(diag, opt)
    open(args[0] if args else "cdna_kernels/" + NAME + ".s", "w").write(txt)
    print("stamps:", names, "lines:", txt.count("\n"))
```

```python
import sys

NAME = "parallel_sum__sliding_local_dilated__glu_gated_reglu__prompt"
FL = 0xA00000
WS_BYTES = FL + 0x10000
OOB = 0x7ff00000
NSTAMP = 9
ST0 = 82
REG = 40960

class G:
    def __init__(self, diag=False, stamps=None):
        self.L = []
        self.vm_n = 0; self.vm_done = 0
        self.lg_n = 0; self.lg_done = 0
        self.smem = False
        self.diag = diag
        self.want = stamps
        self.stamp_names = []
    def e(self, s): self.L.append("    " + s)
    def label(self, s): self.L.append(s + ":")
    def vm(self, s):
        if " lds" in s and self.L[-1].split()[:2] in (["s_add_u32", "m0,"], ["s_mov_b32", "m0,"]): self.e("s_nop 0")
        self.e(s); self.vm_n += 1; return self.vm_n - 1
    def lg(self, s):
        if self.lg_n - self.lg_done >= 15: self.wait(lg=self.lg_done)
        self.e(s); self.lg_n += 1
        return self.lg_n - 1
    def wait(self, vm=None, lg=None):
        parts = []
        if vm is not None and vm >= self.vm_done:
            n = self.vm_n - 1 - vm
            parts.append(f"vmcnt({min(n, 63)})"); self.vm_done = vm + 1
        if lg is not None and lg >= self.lg_done:
            n = self.lg_n - 1 - lg
            if self.smem:
                n = 0; self.smem = False; self.lg_done = self.lg_n
            else:
                self.lg_done = lg + 1
            assert n <= 15
            parts.append(f"lgkmcnt({n})")
        if parts:
            self.e("s_waitcnt " + " ".join(parts)); return 1
        return 0
    def wait_all_lg(self):
        self.e("s_waitcnt lgkmcnt(0)"); self.lg_done = self.lg_n; self.smem = False
    def stamp(self, name):
        if not self.diag or name not in self.want: return
        n = self.want.index(name)
        assert n < NSTAMP, name
        self.e(f"s_memtime s[{ST0+2*n}:{ST0+2*n+1}]"); self.smem = True

DEFAULT_STAMPS = ["start", "x_done", "mfma_start", "pass1_end", "pass2_end", "attn_end", "p2_start", "p2_end", "end"]
DEFAULTS = dict(D=6, WB=3, dmacost=2, dma_gap=2, L=8, mp_issue=10, mp_check=14, op_issue=19, op_check=23, hflag_delay=36, codepf=1, stamps=DEFAULT_STAMPS,
                hp_issue=2, hp_check=2, att_ratio=12, epi_over=4, s_ratio=15, burst=12, touch=1, w2_first=1, b_mode=0, b_poll=10, b_ratio=14, NH=12, rot2=1, b_nst=16, rate=2.6, p2_fill=0, touchB=1, st_early=1, phase=2, w0_early=1, touchN=0, halo_early=1, w0_pos=7, a_nst=12, a_late=1, Lmin=4, o_hold=1, out_sc="", w2_front=1, npre=1)

sW, sMT, sSL, sROT, sM2, sNT, sRB, sMASK = 3, 4, 5, 6, 7, 60, 61, 62
SX, SW1, SQKV, SWD, SWO, SWS, SOUT, SDBG = 8, 12, 16, 20, 24, 28, 32, 36
sP1 = [40 + i for i in range(8)]
sP2 = [48, 49, 80, 81]; s32 = 50; sJ = 51
sXO = [64 + i for i in range(8)]
sT0, sT1, sT2, sT3 = 72, 73, 74, 0
sHST = 52; sW2D = 53; sW2O = 54; sH0 = 55; sH1 = 56; sO0 = 57; sO1 = 58; sTb = 59; sT4 = 63; sT5 = 1
sGK = [75 + i for i in range(5)]
sSPIN = 100; SPIN_MAX = 100000
def srd(r): return f"s[{r}:{r+3}]"
XN = 128; ACCV = 32
def xn(k): return XN + 4 * k
def rr(t, r, n): return f"{t}[{r}:{r+n-1}]"
vL16 = 0
vT = [1 + i for i in range(8)]
vTK = 9
vR, vC = 10, 11
vTmp = [12, 13, 14, 15]
vD1 = [16, 17, 18, 19]
vD2 = [20, 21, 22, 23]
vDW = [24, 25]
vTW = [26, 27]
vHR = [28, 29]
vCK = 30; vX31 = 31
AHK, AHV, AHX, FR = 64, 68, 72, 96
E0 = 32768; HIMG = 36864; KO = 16384; VO = 20992

class Prog:
    def __init__(self, g, o, typ, diag):
        self.g = g; self.o = o; self.typ = typ; self.diag = diag
        self.ids = {}; self.memq = []
    def emit(self, it):
        g = self.g
        if isinstance(it, str): g.e(it)
        elif it[0] == "vm": self.ids[it[1]] = g.vm(it[2])
        elif it[0] == "lg": self.ids[it[1]] = g.lg(it[2])
        elif it[0] == "fn": it[1]()
    def emit_all(self, items):
        for it in items: self.emit(it)
    def W(self, **kw):
        return ("fn", lambda: self.g.wait(**{k: self.ids[v] for k, v in kw.items()}))
    def need(self, key, q=None):
        def f():
            qq = self.memq if q is None else q
            while any(is_vm(it) and it[1] == key for it in qq): self.emit(qq.pop(0))
            self.g.wait(vm=self.ids[key])
        return ("fn", lambda: f())
    def one_vm(self, q):
        while q:
            it = q.pop(0); self.emit(it)
            if is_vm(it): return True
        return False
    def weave(self, work, mem, ratio):
        n = 0
        for j, it in enumerate(work):
            n0 = len(self.g.L); self.emit(it); n += len(self.g.L) - n0
            nx = work[j + 1] if j + 1 < len(work) else None
            if n >= ratio and not (isinstance(nx, str) and nx.startswith(("s_cselect", "s_subb", "s_addc"))):
                n = 0; self.one_vm(mem)

def is_vm(it): return (not isinstance(it, str)) and it[0] == "vm"
def key0(it): return it[1][0] if isinstance(it[1], tuple) else it[1]
def push_front(q, items, after=()):
    j = 0
    for n_, it in enumerate(q):
        if is_vm(it) and key0(it) in after: j = n_ + 1
    while j < len(q) and not (isinstance(q[j], str) and q[j].startswith("s_add_u32 m0")): j += 1
    q[j:j] = items

def ln_scalars(vs, vq, r, c, ta, tb):
    return [f"v_mul_f32 v{vs}, 0x3b000000, v{vs}", f"v_mul_f32 v{vq}, 0x3b000000, v{vq}", f"v_fma_f32 v{vq}, -v{vs}, v{vs}, v{vq}",
            f"v_max_f32 v{vq}, 0, v{vq}", f"v_cvt_pk_bf16_f32 v{ta}, v{vs}, v{vq}", f"v_and_b32 v{tb}, s{sMASK}, v{ta}",
            f"v_add_f32 v{tb}, 0x3727c5ac, v{tb}", f"v_cvt_pk_bf16_f32 v{tb}, v{tb}, v{tb}", f"v_and_b32 v{tb}, s{sMASK}, v{tb}",
            f"v_sqrt_f32 v{tb}, v{tb}", f"v_lshlrev_b32 v{ta}, 16, v{ta}", f"v_cvt_pk_bf16_f32 v{tb}, v{tb}, v{tb}", f"v_and_b32 v{tb}, s{sMASK}, v{tb}",
            f"v_rcp_f32 v{r}, v{tb}", "s_nop 0", f"v_mul_f32_e64 v{c}, -v{ta}, v{r}"]
def norm_dword(d, r, c, ta, tb):
    return [f"v_lshlrev_b32 v{ta}, 16, v{d}", f"v_and_b32 v{tb}, s{sMASK}, v{d}", f"v_fma_f32 v{ta}, v{ta}, v{r}, v{c}",
            f"v_fma_f32 v{tb}, v{tb}, v{r}, v{c}", f"v_cvt_pk_bf16_f32 v{d}, v{ta}, v{tb}"]
def norm_dword_pk(d, rc, ta):
    return [f"v_lshlrev_b32 v{ta}, 16, v{d}", f"v_and_b32 v{ta+1}, s{sMASK}, v{d}",
            f"v_pk_fma_f32 v[{ta}:{ta+1}], v[{ta}:{ta+1}], v[{rc}:{rc+1}], v[{rc}:{rc+1}] op_sel:[0,0,1] op_sel_hi:[1,0,1]",
            f"v_cvt_pk_bf16_f32 v{d}, v{ta}, v{ta+1}"]

vHRAW = 32
vXD = [48, 49, 50, 51]; vXR = [52, 53, 54, 55]; vHW = [56, 57, 58, 59]
vS = [60, 61]; vQ = [62, 63]; vHo = 64; vONE = 65; hS = [77, 78]; hQ = [79, 64]
t0, t1, t2, t3 = 66, 67, 68, 69
hr = 70
vZ = 72
lane = 80; vR4 = 81; vC4 = 82; vTo = [83, 84]; vSg = 85

def common_prologue(g, o, diag):
    e = g.e
    e("s_cmp_ge_u32 s2, 256")
    e("s_cbranch_scc1 L_end")
    g.stamp("start")
    if diag: e("s_memrealtime s[70:71]"); e("s_waitcnt lgkmcnt(0)"); e("s_mov_b32 s101, s70")
    e(f"s_load_dwordx2 s[{SX}:{SX+1}], s[0:1], 0")
    e("s_load_dwordx4 s[40:43], s[0:1], 32")
    for r, off in ((SQKV, 8), (SWO, 16), (SWD, 48), (SOUT, 56), (SDBG, 64), (SWS, 72)):
        e(f"s_load_dwordx2 s[{r}:{r+1}], s[0:1], {off}")
    e("v_lshrrev_b32 v1, 6, v0")
    e(f"v_and_b32 v{lane}, 63, v0")
    e(f"v_readfirstlane_b32 s{sW}, v1")
    e(f"s_lshr_b32 s{sT1}, s2, 3"); e(f"s_bfe_u32 s{sT0}, s2, 0x20001"); e(f"s_and_b32 s{sJ}, s{sT1}, 3")
    if o["codepf"]:
        e("s_getpc_b64 s[44:45]"); g.label("L_pc")
        e(f"s_mov_b32 s46, L_codeend-L_pc"); e("s_mov_b32 s47, 0x20000")
        e(f"s_lshl_b32 s{sT2}, s{sT1}, 2"); e(f"s_add_u32 s{sT2}, s{sT2}, s{sW}"); e(f"s_lshl_b32 s{sT2}, s{sT2}, 9")
        e(f"v_lshlrev_b32 v{t0}, 7, v{lane}"); e(f"v_cmp_gt_u32 vcc, 4, v{lane}"); e(f"v_add_u32 v{t0}, s{sT2}, v{t0}"); e(f"v_mov_b32 v{t1}, {OOB}")
        e(f"v_cndmask_b32 v{t0}, v{t1}, v{t0}, vcc")
        g.vm(f"buffer_load_dword v{vC}, v{t0}, s[44:47], 0 offen")
    e(f"s_lshl_b32 s{sMT}, s{sT0}, 2"); e(f"s_add_u32 s{sMT}, s{sMT}, s{sJ}")
    e(f"s_and_b32 s{sSL}, s2, 1"); e(f"s_lshl_b32 s{sSL}, s{sSL}, 3"); e(f"s_lshr_b32 s{sNT}, s{sT1}, 2"); e(f"s_add_u32 s{sSL}, s{sSL}, s{sNT}")
    if o["phase"] == 2: e(f"s_lshl_b32 s{sT0}, s{sT0}, 1"); e(f"s_add_u32 s{sROT}, s{sT0}, s{sSL}"); e(f"s_and_b32 s{sROT}, s{sROT}, 7")
    elif o["phase"] == 4: e(f"s_lshl_b32 s{sT0}, s{sT0}, 2"); e(f"s_add_u32 s{sROT}, s{sT0}, s{sSL}"); e(f"s_and_b32 s{sROT}, s{sROT}, 7")
    else: e(f"s_and_b32 s{sROT}, s{sSL}, 7")
    e(f"s_lshl_b32 s{sXO[0]}, s{sROT}, 7")
    e(f"s_mul_i32 s{sRB}, s{sW}, {REG}")
    e(f"s_lshl_b32 s{sTb}, s{sMT}, 17"); e(f"s_lshl_b32 s{sT0}, s{sW}, 15"); e(f"s_add_u32 s{sTb}, s{sTb}, s{sT0}")
    e(f"s_mov_b32 s{SX+2}, 2097152"); e(f"s_mov_b32 s{SX+3}, 0x20000")
    e(f"v_lshrrev_b32 v{t0}, 4, v{lane}")
    e(f"v_lshrrev_b32 v{t2}, 3, v{lane}"); e(f"v_lshlrev_b32 v{t2}, 10, v{t2}"); e(f"v_and_b32 v{t3}, 7, v{lane}"); e(f"v_xor_b32 v{t0}, v{t3}, v{t0}")
    e(f"v_add_u32 v{t2}, s{sTb}, v{t2}")
    e(f"v_lshl_add_u32 v{vXD[0]}, v{t0}, 4, v{t2}"); e(f"v_xor_b32 v{vXD[1]}, 64, v{vXD[0]}")
    e(f"v_add_u32 v{vXD[2]}, {2*7168}, v{vXD[0]}"); e(f"v_add_u32 v{vXD[3]}, {3*7168}, v{vXD[1]}"); e(f"v_add_u32 v{vXD[1]}, 7168, v{vXD[1]}")
    e(f"s_add_u32 m0, s{sRB}, 8192")
    e("s_waitcnt lgkmcnt(0)"); g.smem = False
    g.stamp("args")
    last = None
    for i in range(4):
        last = g.vm(f"buffer_load_dwordx4 v{vXD[i]}, {srd(SX)}, s{sXO[0]} offen offset:{1024*i} lds")
    e(f"s_and_b32 s{sM2}, s2, 7"); e(f"s_lshl_b32 s{sM2}, s{sM2}, 2"); e(f"s_add_u32 s{sM2}, s{sM2}, s{sJ}")
    e(f"v_lshlrev_b32 v{vL16}, 4, v{lane}")
    e(f"s_bitcmp1_b32 s{sSL}, 1")
    e("s_cbranch_scc1 L_typeA")
    return last

def program(g, o, typ, diag, xd0):
    P = Prog(g, o, typ, diag); e = g.e; ids = P.ids; emit = P.emit; emit_all = P.emit_all; W = P.W; need = P.need; weave = P.weave
    A = (typ == "A"); X = typ
    D = o["D"]; WB = o["WB"]
    ids[("xd", 0)] = xd0
    sQ = sT3
    e(f"s_lshr_b32 s{sQ}, s{sSL}, 2"); e(f"s_and_b32 s{sT1}, s{sSL}, 1")
    if A:
        e(f"s_cmp_eq_u32 s{sW}, 1"); e(f"s_cselect_b32 s{SW1}, s42, s40"); e(f"s_cselect_b32 s{SW1+1}, s43, s41")
        e(f"s_mul_i32 s{sT0}, s{sQ}, 896"); e(f"s_add_u32 s{sT0}, s{sT0}, 768"); e(f"s_lshl_b32 s{sT2}, s{sQ}, 8")
        e(f"s_lshl_b32 s{sT1}, s{sT1}, 7"); e(f"s_add_u32 s{sT2}, s{sT2}, s{sT1}")
        e(f"s_and_b32 s{sT4}, s{sW}, 1"); e(f"s_lshl_b32 s{sT4}, s{sT4}, 10"); e(f"s_add_u32 s{sT4}, s{sT4}, s{sT2}")
        e(f"s_movk_i32 s{s32}, 3584"); e(f"s_mov_b32 s{SW1+2}, {1835008+4096}")
        e(f"s_cmp_ge_u32 s{sW}, 2"); e(f"s_cselect_b32 s{SW1}, s{SQKV}, s{SW1}"); e(f"s_cselect_b32 s{SW1+1}, s{SQKV+1}, s{SW1+1}")
        e(f"s_cselect_b32 s{sT0}, s{sT4}, s{sT0}"); e(f"s_cselect_b32 s{s32}, 3072, s{s32}"); e(f"s_cselect_b32 s{SW1+2}, {1572864+4096}, s{SW1+2}")
        e(f"s_cselect_b32 s{sT4}, 6, 5")
        e(f"s_cmp_eq_u32 s{sW}, 1"); e(f"s_cselect_b32 s{sT2}, 64, 0")
    else:
        e(f"s_cmp_ge_u32 s{sW}, 2"); e(f"s_cselect_b32 s{SW1}, s42, s40"); e(f"s_cselect_b32 s{SW1+1}, s43, s41"); e(f"s_cselect_b32 s{sT2}, 64, 0")
        e(f"s_mul_i32 s{sT0}, s{sQ}, 896"); e(f"s_mul_i32 s{sT1}, s{sT1}, 384"); e(f"s_add_u32 s{sT0}, s{sT0}, s{sT1}")
        e(f"s_and_b32 s{sT1}, s{sW}, 1"); e(f"s_lshl_b32 s{sT1}, s{sT1}, 7"); e(f"s_add_u32 s{sT0}, s{sT0}, s{sT1}")
        e(f"s_movk_i32 s{s32}, 3584"); e(f"s_mov_b32 s{SW1+2}, {1835008+4096}"); e(f"s_mov_b32 s{sT4}, 5")
    e(f"s_sub_u32 s{SW1}, s{SW1}, 4096"); e(f"s_subb_u32 s{SW1+1}, s{SW1+1}, 0"); e(f"s_mov_b32 s{SW1+3}, 0x20000")
    e(f"s_add_u32 s{sT0}, s{sT0}, 4096"); e(f"s_mov_b32 s{sHST}, s{sT0}")
    e(f"v_lshrrev_b32 v{t0}, 3, v{lane}"); e(f"v_mul_lo_u32 v{t0}, v{t0}, s{s32}"); e(f"v_bfe_u32 v{t1}, v{lane}, 4, 1"); e(f"v_lshlrev_b32 v{t1}, s{sT4}, v{t1}")
    e(f"v_and_b32 v{t2}, 0x70, v{vL16}"); e(f"v_xor_b32 v{t1}, v{t1}, v{t2}"); e(f"v_xor_b32 v{t1}, s{sT2}, v{t1}"); e(f"v_add3_u32 v{t0}, v{t0}, v{t1}, s{sT0}")
    e(f"s_lshl_b32 s{sT1}, s{s32}, 3")
    def vd1(i): return [f"s_xor_b32 s{sT0}, s{sJ}, {i}", f"s_mul_i32 s{sT0}, s{sT0}, s{sT1}", f"s_sub_u32 s{sT0}, s{sT0}, {1024*i}", f"v_add_u32 v{vD1[i]}, s{sT0}, v{t0}"]
    emit_all(vd1(0))
    e(f"s_lshr_b32 s{sT2}, s{s32}, 1"); e(f"s_mul_i32 s{sP1[0]}, s{sXO[0]}, s{sT2}"); e(f"s_lshl_b32 s{sT4}, s{s32}, 5"); e(f"s_add_u32 s{sT4}, s{sT4}, s{sP1[0]}")
    def dma1(st):
        b = 8192 * (st % 4)
        out = [f"s_add_u32 m0, s{sRB}, {b}"]
        for i in range(8):
            if i == 4: out += [f"s_add_u32 m0, s{sRB}, {b + 4096}", f"s_add_u32 s{sP1[st]}, s{sP1[st]}, s{s32}"]
            out.append(("vm", ("w1", st), f"buffer_load_dwordx4 v{vD1[i&3]}, {srd(SW1)}, s{sP1[st]} offen offset:{(i&3)*1024} lds"))
        return out
    def dma2(st):
        b = 8192 * (st % 4); q = st - 8
        out = [f"s_add_u32 m0, s{sRB}, {b}"]
        for i in range(8):
            if i == 4: out += [f"s_add_u32 m0, s{sRB}, {b + 4096}", f"s_add_u32 s{sP2[q]}, s{sP2[q]}, {32*3072 if A else 's%d' % s32}"]
            out.append(("vm", ("w1", st), f"buffer_load_dwordx4 v{(vD2 if A else vD1)[i&3]}, {srd(SQKV if A else SW1)}, s{sP2[q]} offen offset:{(i&3)*1024} lds"))
        return out
    w0 = dma1(0)
    if o["w0_early"]:
        emit_all(w0[:2])
        e(f"s_add_u32 m0, s{sRB}, 4096")
        g.vm(f"buffer_load_dwordx4 v{vD1[0]}, {srd(SW1)}, s{sT4} offen lds")
        w0 = [w0[0]] + w0[2:7] + w0[8:]
    if o["touchN"]:
        N_ = o["touchN"]
        e(f"s_lshl_b32 s{sT0}, s{sROT}, 6"); e(f"s_mul_i32 s{sT4}, s{sMT}, {N_}"); e(f"s_add_u32 s{sT0}, s{sT0}, s{sT4}")
        e(f"v_add_u32 v{t1}, s{sT0}, v{lane}"); e(f"v_and_b32 v{t1}, 511, v{t1}"); e(f"v_cmp_gt_u32 vcc, {N_}, v{lane}")
        e(f"v_mul_lo_u32 v{t1}, v{t1}, s{s32}"); e(f"v_add_u32 v{t1}, s{sHST}, v{t1}"); e(f"v_mov_b32 v{t2}, {OOB}"); e(f"v_cndmask_b32 v{t1}, v{t2}, v{t1}, vcc")
        g.vm(f"buffer_load_dword v{vR}, v{t1}, {srd(SW1)}, 0 offen")
    halo_ld = []
    if A:
        emit_all([f"s_lshl_b32 s{sH1}, s{sMT}, 7", f"s_sub_i32 s{sH1}, s{sH1}, 16", f"s_max_i32 s{sH1}, s{sH1}, 0",
                  f"s_lshl_b32 s{sT0}, s{sW}, 2", f"s_add_u32 s{sH1}, s{sH1}, s{sT0}", f"s_lshl_b32 s{sH1}, s{sH1}, 10",
                  f"v_lshrrev_b32 v{t1}, 4, v{lane}", f"v_lshlrev_b32 v{vHo}, 10, v{t1}", f"v_and_b32 v{t1}, 0xf0, v{vL16}", f"v_add_u32 v{vHo}, v{t1}, v{vHo}",
                  f"v_add_u32 v{vHo}, s{sH1}, v{vHo}"])
        halo_ld = [("vm", "halo", f"buffer_load_dwordx4 v[{vHRAW+4*i}:{vHRAW+4*i+3}], v{vHo}, {srd(SX)}, 0 offen offset:{256*i}") for i in range(4)]
        if o["halo_early"]: emit_all(halo_ld); halo_ld = []
    g.stamp("dma0")
    S = vd1(1) + vd1(2) + vd1(3)
    for s in range(1, 8): S += [f"s_add_u32 s{sXO[s]}, s{sXO[s-1]}, 128", f"s_and_b32 s{sXO[s]}, s{sXO[s]}, 0x380"]
    S += [f"s_mul_i32 s{sP1[s]}, s{sXO[s]}, s{sT2}" for s in range(1, 8)]
    S += [f"s_lshl_b32 s{s32}, s{s32}, 5"]
    S += [f"s_mov_b32 s{sMASK}, 0xffff0000", f"s_mov_b32 s{sSPIN}, 0", f"v_mov_b32 v{vONE}, 0x3f803f80"]
    if A: S += [f"s_sub_u32 s{SQKV}, s{SQKV}, 4096", f"s_subb_u32 s{SQKV+1}, s{SQKV+1}, 0"]
    for r, n in ((SQKV, 1572864 + 4096), (SWO, 524288), (SWD, 1835008), (SOUT, 2097152), (SDBG, 256), (SWS, WS_BYTES)):
        S += [f"s_mov_b32 s{r+2}, {n}", f"s_mov_b32 s{r+3}, 0x20000"]
    S += [f"v_and_b32 v{t0}, 31, v{lane}", f"v_lshlrev_b32 v{t1}, 7, v{t0}", f"v_add_u32 v{t1}, s{sRB}, v{t1}",
          f"v_bfe_u32 v{t2}, v{lane}, 1, 3", f"v_lshrrev_b32 v{t3}, 5, v{lane}", f"v_xor_b32 v{t2}, v{t2}, v{t3}", f"v_xor_b32 v{t2}, s{sJ}, v{t2}",
          f"v_lshl_add_u32 v{vXR[0]}, v{t2}, 4, v{t1}"]
    S += [f"v_xor_b32 v{vXR[jj]}, {32*jj}, v{vXR[0]}" for jj in (1, 2, 3)]
    S += [f"v_bfe_u32 v{vR4}, v{lane}, 2, 2", f"v_and_b32 v{vC4}, 3, v{lane}", f"v_lshlrev_b32 v{vC4}, 3, v{vC4}",
          f"v_bfe_u32 v{t3}, v{lane}, 3, 1", f"v_bfe_u32 v{t2}, v{lane}, 4, 1",
          f"v_lshrrev_b32 v{t0}, 5, v{lane}", f"v_lshl_add_u32 v{t0}, v{t0}, 3, v{vR4}", f"v_lshl_add_u32 v{t0}, v{t0}, 7, v{vC4}",
          f"v_mul_u32_u24 v{t1}, {(REG if A else 2*REG) + 64}, v{t2}", f"v_add_u32 v{t1}, v{t1}, v{t0}", f"v_lshl_add_u32 v{vT[0]}, v{t3}, 5, v{t1}"]
    if A: S += [f"s_and_b32 s{sT0}, s{sSL}, 1", f"s_lshl_b32 s{sT0}, s{sT0}, 6", f"v_xor_b32 v{vT[0]}, s{sT0}, v{vT[0]}", f"v_xor_b32 v{vT[1]}, 32, v{vT[0]}"]
    else: S += [f"v_xor_b32 v{vT[b]}, {32*b}, v{vT[0]}" for b in (1, 2, 3)]
    if A:
        S += [f"v_lshl_add_u32 v{t1}, v{t2}, 5, v{t0}", f"v_lshl_add_u32 v{t1}, v{t3}, 6, v{t1}", f"v_add_u32 v{vT[4]}, {2*REG}, v{t1}", f"v_xor_b32 v{vT[5]}, 64, v{vT[4]}",
              f"v_add_u32 v{vT[6]}, {REG}, v{vT[4]}", f"v_add_u32 v{vT[7]}, {REG}, v{vT[5]}",
              f"v_lshrrev_b32 v{t0}, 4, v{lane}", f"v_lshl_add_u32 v{t0}, v{t0}, 3, v{vR4}", f"v_lshl_add_u32 v{t0}, v{t0}, 7, v{vC4}",
              f"v_lshlrev_b32 v{t1}, 6, v{t3}", f"s_lshl_b32 s{sT0}, s{sW}, 5", f"v_xor_b32 v{t1}, s{sT0}, v{t1}", f"v_add_u32 v{t0}, v{t0}, v{t1}", f"v_add_u32 v{vTK}, {3*REG}, v{t0}"]
    else:
        S += [f"v_add_u32 v{vT[4+b]}, {REG}, v{vT[b]}" for b in range(4)]
    S += [f"v_lshrrev_b32 v{t0}, 5, v{lane}", f"v_lshl_add_u32 v{t0}, v{t0}, 2, v{vR4}", f"v_lshl_add_u32 v{t0}, v{t0}, 7, v{vC4}",
          f"v_add_u32 v{t0}, s{sRB}, v{t0}", f"v_lshl_add_u32 v{t0}, v{t2}, 5, v{t0}",
          f"s_and_b32 s{sT1}, s{sW}, 1", f"v_xor_b32 v{t1}, s{sT1}, v{t3}", f"v_lshl_add_u32 v{vTW[0]}, v{t1}, 6, v{t0}", f"v_xor_b32 v{vTW[1]}, 64, v{vTW[0]}",
          f"v_lshrrev_b32 v{t0}, 3, v{lane}", f"v_lshlrev_b32 v{t0}, 10, v{t0}", f"v_lshlrev_b32 v{t1}, 6, v{t2}", f"v_and_b32 v{t3}, 0x70, v{vL16}", f"v_xor_b32 v{t1}, v{t1}, v{t3}",
          f"v_add_u32 v{vDW[0]}, v{t0}, v{t1}", f"v_add_u32 v{vDW[1]}, 7168, v{vDW[0]}"]
    if A:
        S += [f"s_lshl_b32 s{sT0}, s{sW}, 7", f"s_add_u32 s{sT0}, s{sT0}, s{sXO[0]}", f"s_and_b32 s{sP2[0]}, s{sT0}, 0x380", f"s_xor_b32 s{sP2[1]}, s{sP2[0]}, 0x200"]
        S += [f"s_mul_i32 s{sP2[q]}, s{sP2[q]}, 1536" for q in range(2)]
        S += [f"s_and_b32 s{sT1}, s{sSL}, 1", f"s_lshl_b32 s{sT1}, s{sT1}, 7", f"s_lshl_b32 s{sT0}, s{sQ}, 8", f"s_add_u32 s{sT1}, s{sT1}, s{sT0}", f"s_add_u32 s{sT1}, s{sT1}, {2048+4096}",
              f"v_lshrrev_b32 v{t0}, 3, v{lane}", f"v_mul_u32_u24 v{t0}, 3072, v{t0}", f"v_add3_u32 v{t0}, v{t0}, v{t1}, s{sT1}"]
        for i in range(4): S += [f"s_xor_b32 s{sT0}, s{sJ}, {i}", f"s_mul_i32 s{sT0}, s{sT0}, {8*3072}", f"s_sub_u32 s{sT0}, s{sT0}, {1024*i}", f"v_add_u32 v{vD2[i]}, s{sT0}, v{t0}"]
    else:
        S += [f"s_bitcmp1_b32 s{sW}, 0"] + [f"s_cselect_b32 s{sP2[q]}, s{sP1[2*q+1]}, s{sP1[2*q]}" for q in range(4)] + [f"s_cselect_b32 s{sT0}, 128, 0"]
        S += [f"s_sub_u32 s{sT0}, 256, s{sT0}"] + [f"s_add_u32 s{sP2[q]}, s{sP2[q]}, s{sT0}" for q in range(4)]
    if A:
        S += [f"v_lshrrev_b32 v{t0}, 4, v{lane}", f"s_lshl_b32 s{sT0}, s{sW}, 2", f"v_add_u32 v{t1}, s{sT0}, v{t0}", f"v_and_b32 v{t1}, 7, v{t1}",
              f"v_lshlrev_b32 v{t0}, 10, v{t0}", f"v_add_u32 v{t0}, s{sRB}, v{t0}",
              f"s_lshl_b32 s{sT0}, s{sROT}, 3", f"v_and_b32 v{t2}, 15, v{lane}", f"v_subrev_u32 v{t2}, s{sT0}, v{t2}"]
        for i in range(4):
            S += [f"v_add_u32 v{t3}, {16*i}, v{t2}", f"v_and_b32 v{t3}, 63, v{t3}", f"v_xor_b32 v{t3}, v{t3}, v{t1}", f"v_lshl_add_u32 v{vHW[i]}, v{t3}, 4, v{t0}"]
        S += [f"v_mul_u32_u24 v{t1}, {REG}, v{vR4}", f"v_and_b32 v{t0}, 3, v{lane}", f"v_lshl_add_u32 v{t1}, v{t0}, 10, v{t1}",
              f"v_lshrrev_b32 v{t0}, 4, v{lane}", f"v_and_b32 v{t2}, 7, v{lane}", f"v_xor_b32 v{t0}, v{t0}, v{t2}", f"v_xor_b32 v{t0}, s{sJ}, v{t0}",
              f"v_lshl_add_u32 v{vHR[0]}, v{t0}, 4, v{t1}", f"v_xor_b32 v{vHR[1]}, 64, v{vHR[0]}"]
    if not A:
        S += [f"v_mov_b32 v{vZ+i}, 0" for i in range(4)]
        S += [f"s_lshl_b32 s{sT0}, s{sMT}, 12", f"s_lshl_b32 s{sT1}, s{sW}, 10", f"s_add_u32 s{sT0}, s{sT0}, s{sT1}", f"s_add_u32 s{sT0}, s{sT0}, {FL}",
              f"s_cmp_eq_u32 s{sSL}, 0", f"s_cselect_b32 s{sT0}, s{sT0}, {OOB}", f"v_add_u32 v{vZ+4}, s{sT0}, v{vL16}"]
    S += [f"s_lshl_b32 s{sT5}, s{sMT}, 2"] + ([f"s_add_u32 s{sT5}, s{sT5}, 64"] if o.get("dbgrep") else [])
    if not A:
        S += [f"s_or_b32 s{sT1}, s{sSL}, s{sW}", f"s_cmp_eq_u32 s{sT1}, 0", f"s_cselect_b32 s{sT0}, s{sT5}, 0x1000",
              f"v_lshlrev_b32 v{vX31}, 12, v{lane}", f"v_add_u32 v{vX31}, s{sT0}, v{vX31}", f"v_mov_b32 v{vCK}, 1"]
    if o["touchB"]:
        if A: o["touch"] = 0
        tid = [f"s_lshr_b32 s{sT0}, s{sSL}, 2", f"s_lshl_b32 s{sT0}, s{sT0}, 1", f"s_and_b32 s{sT1}, s{sSL}, 1", f"s_add_u32 s{sT0}, s{sT0}, s{sT1}", f"s_lshl_b32 s{sT0}, s{sT0}, 4", f"s_add_u32 s{sT0}, s{sT0}, s{sMT}"]
        tm = 2
    else:
        tid = [f"s_lshl_b32 s{sT0}, s{sM2}, 3", f"s_add_u32 s{sT0}, s{sT0}, s{sNT}"]; tm = 1
    if o["touch"]:
        S += tid + [f"s_lshl_b32 s{sT0}, s{sT0}, 2", f"s_add_u32 s{sT0}, s{sT0}, s{sW}", f"s_lshl_b32 s{sT0}, s{sT0}, {8+tm}",
          f"v_lshlrev_b32 v{t1}, 7, v{lane}", f"v_add_u32 v{vTo[0]}, s{sT0}, v{t1}", f"v_cmp_gt_u32 vcc, {4*tm}, v{lane}", f"v_mov_b32 v{t0}, {OOB}",
          f"s_lshr_b32 s{sT0}, s{sT0}, 2", f"v_cndmask_b32 v{vTo[0]}, v{t0}, v{vTo[0]}, vcc",
          f"s_mul_i32 s{sT0}, s{sT0}, 14", f"v_cmp_gt_u32 vcc, {14*tm}, v{lane}", f"v_add_u32 v{vTo[1]}, s{sT0}, v{t1}", "s_nop 0", f"v_cndmask_b32 v{vTo[1]}, v{t0}, v{vTo[1]}, vcc"]
    S += [f"s_lshl_b32 s{sTb}, s{sMT}, 2", f"s_add_u32 s{sTb}, s{sTb}, s{sW}", f"s_mul_i32 s{sTb}, s{sTb}, {144*1024}",
          f"s_mul_i32 s{sT0}, s{sQ}, {28*1024}", f"s_add_u32 s{sHST}, s{sTb}, s{sT0}", f"s_and_b32 s{sT1}, s{sSL}, 1"]
    if A:
        S += [f"s_lshl_b32 s{sT1}, s{sT1}, 11", f"s_add_u32 s{sHST}, s{sHST}, s{sT1}", f"s_add_u32 s{sHST}, s{sHST}, {56*1024}",
              f"s_lshl_b32 s{sT0}, s{sQ}, 13", f"s_add_u32 s{sTb}, s{sTb}, s{sT0}", f"s_lshl_b32 s{sT1}, s{sT1}, 1", f"s_add_u32 s{sTb}, s{sTb}, s{sT1}"]
    else:
        S += [f"s_mul_i32 s{sT1}, s{sT1}, {12*1024}", f"s_add_u32 s{sHST}, s{sHST}, s{sT1}", f"s_add_u32 s{sHST}, s{sHST}, {32*1024}", f"s_add_u32 s{sTb}, s{sHST}, 8192"]
    S += [f"s_lshl_b32 s{sT0}, s{sNT}, 7", f"s_mul_i32 s{sW2D}, s{sW}, {448*1024}", f"s_add_u32 s{sW2D}, s{sW2D}, s{sT0}",
          f"s_lshl_b32 s{sW2O}, s{sW}, 17", f"s_add_u32 s{sW2O}, s{sW2O}, s{sT0}",
          f"s_lshl_b32 s{sT0}, s{sM2}, 1", f"s_lshr_b32 s{sT1}, s{sW}, 1", f"s_add_u32 s{sT2}, s{sT0}, s{sT1}", f"s_xor_b32 s{sT4}, s{sT2}, 1",
          f"s_mul_i32 s{sT2}, s{sT2}, {144*1024}", f"s_mul_i32 s{sT4}, s{sT4}, {144*1024}",
          f"s_mul_i32 s{sT0}, s{sW}, {28*1024}", f"s_add_u32 s{sT0}, s{sT0}, {32*1024}", f"s_add_u32 s{sH0}, s{sT2}, s{sT0}", f"s_add_u32 s{sH1}, s{sT4}, s{sT0}",
          f"s_lshl_b32 s{sT0}, s{sW}, 13", f"s_add_u32 s{sO0}, s{sT2}, s{sT0}", f"s_add_u32 s{sO1}, s{sT4}, s{sT0}"]
    S += {0: [f"s_mov_b32 s{sT0}, 0"], 1: [f"s_lshr_b32 s{sT0}, s{sM2}, 2"], 2: [f"s_lshl_b32 s{sT0}, s{sJ}, 1", f"s_lshr_b32 s{sT1}, s{sM2}, 2", f"s_add_u32 s{sT0}, s{sT0}, s{sT1}"]}[o["rot2"]]
    S += [f"s_mul_i32 s{sT1}, s{sT0}, 52", f"s_lshr_b32 s{sT1}, s{sT1}, 8", f"s_mul_i32 s{sT1}, s{sT1}, 5", f"s_sub_u32 s{sT0}, s{sT0}, s{sT1}"]
    for x in range(14): assert (x * 52) >> 8 == x // 5
    for j in range(5):
        S += [f"s_lshr_b32 s{sT1}, s{sT0}, 1", f"s_add_u32 s{sT1}, s{sT1}, s{sT0}", f"s_lshl_b32 s{sGK[j]}, s{sT1}, 12"]
        if j < 4: S += [f"s_add_u32 s{sT0}, s{sT0}, 1", f"s_cmp_eq_u32 s{sT0}, 5", f"s_cselect_b32 s{sT0}, 0, s{sT0}"]
    emit_all(S)
    g.stamp("B")
    def xdma(s):
        return [f"s_add_u32 m0, s{sRB}, {8192 + 4096*s}"] + \
               [("vm", ("xd", s), f"buffer_load_dwordx4 v{vXD[i]}, {srd(SX)}, s{sXO[s]} offen offset:{1024*i} lds") for i in range(4)]
    H = []
    if A:
        H = [("fn", lambda: emit(need("halo", mem)))]
        for i in range(16):
            d = vHRAW + i
            H += [f"v_dot2_f32_bf16 v{hS[i&1]}, v{d}, v{vONE}, {'0' if i < 2 else 'v%d' % hS[i&1]}",
                  f"v_dot2_f32_bf16 v{hQ[i&1]}, v{d}, v{d}, {'0' if i < 2 else 'v%d' % hQ[i&1]}"]
        H += ["s_nop 2", f"v_add_f32 v{hS[0]}, v{hS[0]}, v{hS[1]}", f"v_add_f32 v{hQ[0]}, v{hQ[0]}, v{hQ[1]}"]
        for sh in (8, 4, 2, 1):
            H += ["s_nop 0", f"v_add_f32_dpp v{hS[0]}, v{hS[0]}, v{hS[0]} row_ror:{sh} row_mask:0xf bank_mask:0xf",
                  f"v_add_f32_dpp v{hQ[0]}, v{hQ[0]}, v{hQ[0]} row_ror:{sh} row_mask:0xf bank_mask:0xf"]
        H += ln_scalars(hS[0], hQ[0], hr, hr + 1, t0, t1)
        for i in range(16): H += norm_dword_pk(vHRAW + i, hr, t0 + 2 * (i & 1))
    def xread(s):
        return [need(("xd", s), mem)] + [("lg", ("xr", 4 * s + jj), f"ds_read_b128 v[{xn(4*s+jj)}:{xn(4*s+jj)+3}], v{vXR[jj]} offset:{8192 + 4096*s}") for jj in range(4)]
    def xstats(s):
        out = []
        for jj in range(4):
            k = 4 * s + jj
            if jj % 2 == 0: out.append(W(lg=("xr", k + 1)))
            for i in range(4):
                d = xn(k) + i; z = (k == 0 and i < 2)
                out += [f"v_dot2_f32_bf16 v{vS[i&1]}, v{d}, v{vONE}, {'0' if z else 'v%d' % vS[i&1]}",
                        f"v_dot2_f32_bf16 v{vQ[i&1]}, v{d}, v{d}, {'0' if z else 'v%d' % vQ[i&1]}"]
        return out
    mem = list(halo_ld)
    for s in range(1, 8):
        mem += xdma(s)
        if s == o["w0_pos"]: mem += w0
    if not A: mem += [("vm", "clr", f"buffer_store_dwordx4 v[{vZ}:{vZ+3}], v{vZ+4}, {srd(SWS)}, 0 offen sc1")]
    for _ in range(o["burst"]): P.one_vm(mem)
    g.stamp("Bx")
    tdst = (vCK, vX31) if A else vHR
    touch = [("vm", "touch", f"buffer_load_dword v{tdst[0]}, v{vTo[0]}, {srd(SWO)}, 0 offen"), ("vm", "touch", f"buffer_load_dword v{tdst[1]}, v{vTo[1]}, {srd(SWD)}, 0 offen")] if o["touch"] else []
    work = list(H) + xread(0)
    for s in range(8):
        if s + 1 < 8: work += xread(s + 1)
        if s == 7 and A:
            work.append(W(lg=("xr", 31)))
            work += [("lg", "hw", f"ds_write_b128 v{vHW[i]}, v[{vHRAW+4*i}:{vHRAW+4*i+3}] offset:{HIMG}") for i in range(4)]
        if s < 7: work += xstats(s)
        if s == 1: work.append(("fn", lambda: mem.extend((touch if o["touch"] == 1 else []) + dma1(1))))
        work.append(("fn", lambda s=s: g.stamp(f"st{s}")))
    weave(work, mem, o["s_ratio"] if A else o["s_ratio"] * 2 // 3)
    while any(is_vm(m) and m[1] in ("clr", ("w1", 0), "touch") for m in mem): emit(mem.pop(0))
    memq = P.memq
    if o["touch"] == 2:
        emit_all([f"v_mov_b32 v{tdst[i]}, v{vTo[i]}" for i in range(2)])
        touch = [("vm", "touch", f"buffer_load_dword v{tdst[0]}, v{tdst[0]}, {srd(SWO)}, 0 offen"), ("vm", "touch", f"buffer_load_dword v{tdst[1]}, v{tdst[1]}, {srd(SWD)}, 0 offen")]
        memq.extend(mem + dma1(2) + touch + dma1(3))
    else: memq.extend(mem + dma1(2) + dma1(3))

    def acc1(b):
        if A: return ("v", 32 + 16 * b)
        return ("v", 32 + 16 * b) if b < 2 else ("a", 16 * (b - 2))
    vU = [[vD1[0], vD1[1], vT[4], vT[6]], [vD1[2], vD1[3], vT[5], vT[7]]]
    frags = []
    for st in range(8):
        for jj in range(4):
            for b, ad in enumerate([vT[0], vT[1], vT[4], vT[5], vT[6], vT[7]] if A else vT):
                base = 8192 * (st % 4) + 2048 * jj
                frags.append(dict(st=st, addr=ad, o0=base, o1=base + 512, kind="m", k=4 * st + jj, dst=acc1(b)))
            if A and (jj & 1):
                base = 8192 * (st % 4) + 4096 * (jj >> 1)
                frags.append(dict(st=st, addr=vTK, o0=base, o1=base + 512, kind="h", k=2 * st + (jj >> 1), dst=("a", AHK)))
    NP1 = len(frags)
    vUH = [vT[2], vT[3], vX31, vTK]
    if A:
        for q in range(2):
            st = 8 + q
            for kk in range(16):
                rg, jj = kk >> 2, kk & 3
                for b in range(2):
                    base = 8192 * (st % 4) + 2048 * jj
                    frags.append(dict(st=st, addr=vU[b][rg], o0=base, o1=base + 512, kind="m", k=16 * q + kk, dst=("a", 32 + 16 * b), p2=True))
                if jj & 1:
                    base = 8192 * (st % 4) + 4096 * (jj >> 1)
                    frags.append(dict(st=st, addr=vUH[rg], o0=base, o1=base + 512, kind="h", k=8 * q + (kk >> 1), dst=("a", AHV), p2=True))
    else:
        for q in range(4):
            st = 8 + q
            for kk in range(8):
                for b in range(4):
                    base = 8192 * (st % 4) + 2048 * (kk & 3)
                    frags.append(dict(st=st, addr=vT[4 * (kk >> 2) + b], o0=base, o1=base + 512, kind="m", k=8 * q + kk, dst=("v", 64 + 16 * b), p2=True))
    NF = len(frags)
    kfirst = {}
    for i, f in enumerate(frags):
        if f["kind"] == "m" and not f.get("p2"): kfirst.setdefault(f["k"], i)
    stfirst = {}
    for i, f in enumerate(frags): stfirst.setdefault(f["st"], i)
    frd = {}
    hiq = []; loq = []; ldsq = []; stq = []
    cur = [0]; done = set(); lastvm = [-9]; nvm = [0]
    def add_hi(items, deadline):
        n = len(items); t_ = cur[0]
        new = [(t_ + (deadline - t_) * (j + 1) // n, it) for j, it in enumerate(items)]
        merged = []; a = b = 0
        while a < len(hiq) or b < len(new):
            if b >= len(new) or (a < len(hiq) and hiq[a][0] <= new[b][0]): merged.append(hiq[a]); a += 1
            else: merged.append(new[b]); b += 1
        hiq[:] = merged
    NREG = 16; W2R = 128
    unit = {}
    EU = [E0 + 2048 * i for i in range(4)]
    if A:
        NREG = NS = o["a_nst"]
        for ks in range(NS + 2): unit[ks] = EU[ks & 1]
        U10 = [2048 * j for j in range(8)] + [EU[2], EU[3]]
        la1 = list(range(NS + 2, NS + 12))
        for j, ks in enumerate(la1): unit[ks] = U10[j]
        la4 = list(range(NS + 12, 36))
        for j, ks in enumerate(la4): unit[ks] = unit[NS + j]
        RU = 30720
    else:
        NREG = NS = o["b_nst"]
        for ks in range(NS + 4): unit[ks] = EU[ks & 3]
        lb1 = list(range(NS + 4, NS + 8)); lb2 = list(range(NS + 8, NS + 11)); lb3 = list(range(NS + 11, min(36, NS + 19))); lb4 = list(range(NS + 19, 36))
        for j, ks in enumerate(lb1 + lb2): unit[ks] = 2048 * j
        for j, ks in enumerate(lb3): unit[ks] = 16384 + 2048 * ((j + 7) & 7)
        for j, ks in enumerate(lb4): unit[ks] = unit[NS + j]
        RU = 14336
    def w2reg(ks): return W2R + 8 * ks if ks < 16 else 8 * (ks - 16) if ks < 20 else 80 + 8 * (ks - 20)
    def w2dma(ks_list):
        out = []; prev = None
        for ks in ks_list:
            sr = SWD if ks < 28 else SWO
            if prev is not None and ks == prev + 1 and (ks & 1) and unit[ks] == unit[prev] + 2048:
                out.append(f"s_add_u32 s{sT4}, s{sT4}, {16384 - 2048}"); base = 2048
            else:
                out.append(f"s_add_u32 m0, s{sRB}, {unit[ks]}"); base = 0
                if ks < 20:
                    out += [f"s_lshl_b32 s{sT4}, s{sGK[ks>>2]}, 4", f"s_add_u32 s{sT4}, s{sT4}, s{sW2D}"]
                    if ks & 3: out.append(f"s_add_u32 s{sT4}, s{sT4}, {(ks&3)*16384}")
                elif ks < 28: out.append(f"s_add_u32 s{sT4}, s{sW2D}, {((8 if ks < 24 else 20) + (ks & 3))*16384}")
                else: out.append(f"s_add_u32 s{sT4}, s{sW2O}, {(ks-28)*16384}")
            for j in range(2):
                out.append(("vm", ("w2", ks), f"buffer_load_dwordx4 v{vDW[j]}, {srd(sr)}, s{sT4} offen offset:{base + 1024*j} lds"))
            prev = ks
        return out
    def w2toreg(ks):
        out = [need(("w2", ks))]
        if o.get("x_now2wait"): out = [("fn", lambda: [emit(memq.pop(0)) for _ in range(max([n_ + 1 for n_, it in enumerate(memq) if is_vm(it) and it[1] == ("w2", ks)] + [0]))])]
        for nb in range(2):
            r = w2reg(ks) + 4 * nb
            for sec in range(2):
                out.append(("lg", ("w2r", ks), f"ds_read_b64_tr_b16 a[{r+2*sec}:{r+2*sec+1}], v{vTW[nb]} offset:{unit[ks] + 1024*sec}"))
        return out
    def stage_w2(rd_list, next_list):
        for ks in rd_list: ldsq.extend(w2toreg(ks))
        def refill():
            its = [W(lg=("w2r", rd_list[-1]))] + w2dma(next_list)
            if o["w2_front"]: push_front(memq, its, after=("hst",))
            else: memq.extend(its)
            done.add(("rf", next_list[0]))
        ldsq.append(("fn", refill))
    sXR = sXO[0]; vRD = vHR[0] if not A else vD2[3]
    lane2 = vTmp[0]
    res_setup = [f"s_lshl_b32 s{sXR}, s{sM2}, 16", f"s_lshr_b32 s{sT0}, s{sW}, 1", f"s_lshl_b32 s{sT0}, s{sT0}, 15", f"s_add_u32 s{sXR}, s{sXR}, s{sT0}",
                 f"s_lshl_b32 s{sT0}, s{sNT}, 7", f"s_add_u32 s{sXR}, s{sXR}, s{sT0}", f"s_and_b32 s{sT0}, s{sW}, 1", f"s_lshl_b32 s{sT0}, s{sT0}, 6", f"s_add_u32 s{sXR}, s{sXR}, s{sT0}",
                 f"v_lshrrev_b32 v{vCK}, 6, v{vL16}", f"v_lshlrev_b32 v{vCK}, 10, v{vCK}", f"v_lshrrev_b32 v{vRD}, 4, v{vL16}", f"v_xor_b32 v{vRD}, v{vRD}, v{vL16}",
                 f"v_and_b32 v{vRD}, 0x30, v{vRD}", f"v_add_u32 v{vRD}, v{vRD}, v{vCK}"]
    resid = [f"s_add_u32 m0, s{sRB}, {RU}", ("vm", "res", f"buffer_load_dwordx4 v{vRD}, {srd(SX)}, s{sXR} offen lds"),
             f"s_add_u32 m0, s{sRB}, {RU+1024}", f"s_add_u32 s{sT4}, s{sXR}, 16384", ("vm", "res", f"buffer_load_dwordx4 v{vRD}, {srd(SX)}, s{sT4} offen lds")]
    vFl, vPo, vOne, vPd = (vD2[0], vD2[1], vR, vC) if A else (vTK, vHR[1], vR, vC)
    flag_setup = [f"s_lshl_b32 s{sT0}, s{sMT}, 1", f"s_lshr_b32 s{sT1}, s{sW}, 1", f"s_add_u32 s{sT0}, s{sT0}, s{sT1}", f"s_lshl_b32 s{sT0}, s{sT0}, 11",
                  f"s_lshl_b32 s{sT1}, s{sSL}, 3", f"s_add_u32 s{sT0}, s{sT0}, s{sT1}", f"s_and_b32 s{sT1}, s{sW}, 1", f"s_lshl_b32 s{sT1}, s{sT1}, 2",
                  f"s_add_u32 s{sT0}, s{sT0}, s{sT1}", f"s_add_u32 s{sT0}, s{sT0}, {FL}",
                  f"v_lshlrev_b32 v{vFl}, 4, v{vL16}", f"v_add_u32 v{vFl}, s{sT0}, v{vFl}", f"v_cmp_gt_u32 vcc, 128, v{vL16}", f"v_mov_b32 v{vPo}, {OOB}",
                  f"s_lshl_b32 s{sT0}, s{sM2}, 3", f"v_cndmask_b32 v{vFl}, v{vPo}, v{vFl}, vcc",
                  f"s_add_u32 s{sT0}, s{sT0}, s{sNT}", f"s_lshl_b32 s{sT0}, s{sT0}, 8", f"s_lshl_b32 s{sT1}, s{sW}, 5",
                  f"s_add_u32 s{sT0}, s{sT0}, s{sT1}", f"s_add_u32 s{sT0}, s{sT0}, {FL}",
                  f"v_bfe_u32 v{vPo}, v{vL16}, 4, 3", f"v_lshlrev_b32 v{vPo}, 2, v{vPo}", f"v_add_u32 v{vPo}, s{sT0}, v{vPo}", f"v_mov_b32 v{vOne}, 1"]
    NST = 10 if A else 12
    def on_barrier(s):
        nxt = s + 3
        if 4 <= nxt < NST: push_front(memq, dma1(nxt) if nxt < 8 else dma2(nxt), after=("w1",))
        if nxt == NST - 1: done.add("lastw1")
        if s == 2:
            memq.append(("vm", "dbgchk", f"buffer_load_dword v{vCK}, off, {srd(SDBG)}, s{sT5} sc1"))
        if s == 4:
            def chk():
                g.wait(vm=ids["dbgchk"])
                e(f"v_readfirstlane_b32 s2, v{vCK}")
                e(f"s_cmp_lg_u32 s2, 0")
                e(f"s_cbranch_scc0 L_dbgspin{X}")
                g.label(f"L_dbgok{X}")
            add_hi([("fn", chk)], stfirst[6])
        if A and s == 5: add_hi([f"v_subrev_u32 v{vUH[r]}, {REG*(3-r)}, v{vTK}" for r in range(3)], stfirst[7])
        if A and s == 6:
            assert not any(is_vm(it) and it[1] == ("w1", 7) for it in memq)
            its = []
            for b in range(2): its += [f"v_subrev_u32 v{vU[b][0]}, {2*REG}, v{vT[4+b]}", f"v_subrev_u32 v{vU[b][1]}, {REG}, v{vT[4+b]}"]
            add_hi(its + [("fn", lambda: done.add("vU"))], stfirst[8] - D - 2)
        if A and s == 7: assert "vU" in done
        f0 = o["w2_first"]
        if s == f0 - 1: memq.extend(w2dma([0, 1]))
        if not A:
            if s == f0: memq.extend(w2dma([2, 3]))
            if s == 9: memq.extend(w2dma(lb1))
            if s == 10: memq.extend(resid + w2dma(lb2))
        if A and s == 8: memq.extend(resid)
    w2steps = []
    if A:
        g0 = stfirst[o["w2_first"] + 1] - D; g1 = NP1 - 2; nc = NS // 2; late_c = o["a_late"]
        for c in range(nc):
            if c < nc - late_c: at = g1 - (g1 - g0) * (nc - late_c - 1 - c) // max(1, nc - late_c - 1)
            else: at = NF - 14 - (nc - 1 - c) * ((NF - 14 - NP1) // late_c)
            w2steps.append((at, [2 * c, 2 * c + 1], [2 * c + 2, 2 * c + 3]))
        RF = 2 * (nc - late_c)
    else:
        g0 = stfirst[o["w2_first"] + 2] - D; g1 = stfirst[8] - D; nc = NS // 2
        for c in range(nc):
            if c < nc - 2: at = g1 - (g1 - g0) * (nc - 3 - c) // max(1, nc - 3)
            else: at = stfirst[9 + c - (nc - 2)] - D
            w2steps.append((at, [2 * c, 2 * c + 1], [2 * c + 4, 2 * c + 5]))
        RF = NS - 2
        if nc <= 2: done.add(("rf", RF))
    def issue_frag(i):
        f = frags[i]; n = 0
        if i > 0 and frags[i - 1]["st"] != f["st"]:
            assert not any(is_vm(it) and it[1] == ("w1", f["st"]) for it in memq), f["st"]
            g.stamp(f"preB{f['st']-1}")
            if not o.get("x_novmw"): n += g.wait(vm=ids[("w1", f["st"])])
            e("s_barrier"); n += 1
            g.stamp(f"B{f['st']-1}")
            on_barrier(f["st"] - 1)
        r = FR + 4 * (i % 8)
        if f["kind"] == "h":
            hx = AHX + 4 * (f["k"] & 1)
            g.lg(f"ds_read_b128 a[{hx}:{hx+3}], v{vHR[f['k']&1]} offset:{HIMG + 128*(f['k']>>1)}"); n += 1
        g.lg(f"ds_read_b64_tr_b16 a[{r}:{r+1}], v{f['addr']} offset:{f['o0']}")
        frd[i] = g.lg(f"ds_read_b64_tr_b16 a[{r+2}:{r+3}], v{f['addr']} offset:{f['o1']}")
        return n + 2
    def ln_items(k):
        out = []
        for i in range(4): out += norm_dword(xn(k) + i, vR, vC, vTmp[2 * (i & 1)], vTmp[2 * (i & 1) + 1])
        return out
    g.wait(vm=max(ids.get("clr", 0), ids[("w1", 0)]), lg=ids.get("hw"))
    e("s_barrier")
    on_barrier(-1)
    for i in range(D): issue_frag(i)
    emit_all(xstats(7))
    g.stamp("x_done")
    e("s_nop 1")
    e(f"v_add_f32 v{vS[0]}, v{vS[0]}, v{vS[1]}"); e(f"v_add_f32 v{vQ[0]}, v{vQ[0]}, v{vQ[1]}")
    e(f"v_mov_b32 v{vS[1]}, v{vS[0]}"); e(f"v_mov_b32 v{vQ[1]}, v{vQ[0]}"); e("s_nop 0")
    e(f"v_permlane32_swap_b32 v{vS[0]}, v{vS[1]}"); e(f"v_permlane32_swap_b32 v{vQ[0]}, v{vQ[1]}")
    e(f"v_add_f32 v{vS[0]}, v{vS[0]}, v{vS[1]}"); e(f"v_add_f32 v{vQ[0]}, v{vQ[0]}, v{vQ[1]}")
    emit_all(ln_scalars(vS[0], vQ[0], vR, vC, t0, t1))
    npre = o["npre"]
    weave([x for k in range(npre) for i in range(4) for x in norm_dword_pk(xn(k) + i, vR, vTmp[2 * (i & 1)])], memq, 16)
    if not A: memq.append(("vm", "sig", f"buffer_store_dword v{vCK}, v{vX31}, {srd(SDBG)}, 0 offen sc1"))
    e("s_nop 0")
    g.stamp("mfma_start")
    for k in range(npre, 32):
        its_ = ln_items(k) if not o.get("x_noln") else []; a_, b_ = kfirst[k - 1], kfirst[k] - 1
        for j_, x in enumerate(its_): hiq.append((b_ - 1 - (len(its_) - 1 - j_) // 6, x))

    def mlp_epi(t, r, tmp, key, sreg, imm, pre=(), pk=None, after=None, ut=None):
        out = []
        if t == "a":
            out += [f"v_accvgpr_read_b32 v{tmp+i}, a{r+i}" for i in range(8)]
            out += [f"v_max_f32 v{tmp+i}, 0, v{tmp+i}" for i in range(8)]
            for hh in range(2):
                out += [f"v_accvgpr_read_b32 v{ut+i}, a{r+8+4*hh+i}" for i in range(4)]
                out += [f"v_mul_f32 v{tmp+4*hh+i}, v{tmp+4*hh+i}, v{ut+i}" for i in range(4)]
            r = tmp; Pk = pk
            if after is not None: out.append(("fn", lambda: chk_issued(after)))
        else:
            out += [f"v_max_f32 v{r+i}, 0, v{r+i}" for i in range(8)]
            out += [f"v_mul_f32 v{r+i}, v{r+i}, v{r+8+i}" for i in range(8)]
            Pk = r + 8
        out += [f"v_cvt_pk_bf16_f32 v{Pk+i}, v{r+2*i}, v{r+2*i+1}" for i in range(4)]
        st = list(pre) + [("vm", key, f"buffer_store_dwordx4 v[{Pk}:{Pk+3}], v{vL16}, {srd(SWS)}, s{sreg} offen offset:{imm} sc1")]
        return out, st
    def chk_issued(key): assert key in ids, key
    nE = 2 if A else 8
    def hflag():
        g.wait(vm=ids[("hst", nE - 1)])
        g.vm(f"buffer_store_dword v{vOne}, v{vFl}, {srd(SWS)}, 0 offen sc1")
        g.stamp("hflag"); done.add("hflag")
    Qb, Kb = [64, 80], [96, 112]
    vKW, vKH = vD2[2], vTmp[2]
    for i in range(NF):
        f = frags[i]
        used = 2; cur[0] = i
        if i % WB == 0: used += g.wait(lg=frd[min(i + WB - 1, NF - 1)])
        else: used += g.wait(lg=frd[i])
        g.stamp(f"m{i}")
        fr = f"a[{FR + 4*(i%8)}:{FR + 4*(i%8) + 3}]"
        if f["kind"] == "m":
            dst = rr(*f["dst"], 16); cap = 8
            e(f"v_mfma_f32_32x32x16_bf16 {dst}, {fr}, v[{xn(f['k'])}:{xn(f['k'])+3}], {dst if f['k'] else '0'}")
        else:
            dst = rr(*f["dst"], 4); cap = 4; hx = AHX + 4 * (f["k"] & 1)
            e(f"v_mfma_f32_16x16x32_bf16 {dst}, {fr}, a[{hx}:{hx+3}], {dst if f['k'] else '0'}")
        if i + D < NF: used += issue_frag(i + D)
        while w2steps and w2steps[0][0] <= i:
            _, rd_, nx_ = w2steps.pop(0); stage_w2(rd_, nx_)
        if i == NP1 + 2:
            for b in range(nE):
                t, r = acc1(b)
                pk = {2: vTmp[0], 3: vD2[0], 4: ACCV + 12, 5: ACCV + 28, 6: ACCV, 7: ACCV + 16}.get(b)
                its, st = mlp_epi(t, r, ACCV + 16 * (b & 1), ("hst", b), sHST, (b & 3) * 1024, [f"s_add_u32 s{sHST}, s{sHST}, 4096"] if b == 4 else [],
                                  pk=pk, ut=(ACCV + 16 * (b & 1) + 12) if b < 6 else (28 if b == 6 else ACCV + 4))
                loq.extend(its + [("fn", lambda st=st: stq.extend(st))])
            loq.extend(["GATE"] + flag_setup + res_setup + [("fn", lambda: done.add("setup"))])
            if A:
                a0, a1 = vTmp[0], vTmp[1]
                its = [f"v_and_b32 v{a0}, 0x1f0, v{vL16}", f"v_lshrrev_b32 v{a1}, 9, v{vL16}", f"v_mul_u32_u24 v{a1}, {2*REG}, v{a1}", f"s_lshl_b32 s{sT0}, s{sW}, 9",
                       f"v_add3_u32 v{vKW}, v{a0}, v{a1}, s{sT0}"]
                for hp in range(2):
                    its += [f"v_cvt_pk_bf16_f32 v{Kb[hp]+j}, v{Kb[hp]+2*j}, v{Kb[hp]+2*j+1}" for j in range(8)]
                for hp in range(2):
                    its += [f"v_permlane32_swap_b32 v{Kb[hp]+j}, v{Kb[hp]+4+j}" for j in range(4)]
                for hp in range(2):
                    its += [("lg", "kw", f"ds_write_b128 v{vKW}, v[{Kb[hp]}:{Kb[hp]+3}] offset:{KO + 256 + 2304*hp}"),
                            ("lg", "kw", f"ds_write_b128 v{vKW}, v[{Kb[hp]+4}:{Kb[hp]+7}] offset:{KO + 256 + 2304*hp + REG}")]
                its += [f"v_accvgpr_read_b32 v{Kb[0]+8+j}, a{AHK+j}" for j in range(4)]
                its += [f"v_bfe_u32 v{a1}, v{vL16}, 8, 1", f"v_mul_u32_u24 v{a1}, {REG}, v{a1}", f"v_and_b32 v{a0}, 0xf0, v{vL16}", f"v_add_u32 v{a0}, v{a0}, v{a1}",
                        f"v_lshrrev_b32 v{a1}, 9, v{vL16}", f"v_lshl_add_u32 v{a0}, v{a1}, 3, v{a0}",
                        f"s_and_b32 s{sT0}, s{sW}, 1", f"s_mul_i32 s{sT0}, s{sT0}, {2*REG}", f"s_lshr_b32 s{sT1}, s{sW}, 1", f"s_mul_i32 s{sT1}, s{sT1}, 2304",
                        f"s_add_u32 s{sT0}, s{sT0}, s{sT1}", f"v_add_u32 v{vKH}, s{sT0}, v{a0}",
                        f"v_cvt_pk_bf16_f32 v{Kb[0]+8}, v{Kb[0]+8}, v{Kb[0]+9}", f"v_cvt_pk_bf16_f32 v{Kb[0]+9}, v{Kb[0]+10}, v{Kb[0]+11}",
                        ("lg", "kw", f"ds_write_b64 v{vKH}, v[{Kb[0]+8}:{Kb[0]+9}] offset:{KO}")]
                for hp in range(2):
                    its += [f"v_cvt_pk_bf16_f32 v{Qb[hp]+j}, v{Qb[hp]+2*j}, v{Qb[hp]+2*j+1}" for j in range(8)]
                for hp in range(2):
                    its += [f"v_permlane32_swap_b32 v{Qb[hp]+j}, v{Qb[hp]+4+j}" for j in range(4)]
                loq.extend(its)
        if i == NP1 - 1: g.stamp("pass1_end")
        if not A and i == NF - o["b_poll"]:
            assert "setup" in done
            ids["hp"] = g.vm(f"buffer_load_dword v{vPd}, v{vPo}, {srd(SWS)}, 0 offen sc1"); used += 2
        if ("hst", nE - 1) in ids and "hst_gap" not in ids: ids["hst_gap"] = i; g.stamp("hst")
        if "hst_gap" in ids and "hflag" not in done and "setup" in done and i >= ids["hst_gap"] + o["hflag_delay"]: hflag(); used += 2
        early = o["st_early"] and not A
        pre_ok = ("rf", RF) in done and ("lastw1" in done or early) and not any(is_vm(it) and ((key0(it) == "w1" and not (early and it[1][1] == 11)) or (key0(it) == "w2" and it[1][1] < RF + 2)) for it in memq)
        if stq and pre_ok:
            j_ = max([n_ + 1 for n_, it in enumerate(memq) if is_vm(it) and key0(it) == "hst"] + [0])
            memq[j_:j_] = stq; stq[:] = []
        if ldsq and cap == 8:
            while ldsq and ldsq[0][0] == "fn": emit(ldsq.pop(0))
            if ldsq and (g.lg_n - g.lg_done) < 15:
                emit(ldsq.pop(0)); used += 1
            while ldsq and ldsq[0][0] == "fn" and ldsq[0][1].__name__ != "<lambda>": emit(ldsq.pop(0))
        while memq and cap == 8 and i >= lastvm[0] + o["dma_gap"] - (0 if is_vm(memq[0]) else 1):
            it = memq[0]
            if it == resid[0] and "setup" not in done: break
            if is_vm(it):
                nvm[0] += 1
                g.stamp(f"d{nvm[0]}a")
                memq.pop(0); emit(it); used += o["dmacost"]; lastvm[0] = i
                g.stamp(f"d{nvm[0]}b")
                break
            if used >= cap: break
            memq.pop(0); n0 = len(g.L); emit(it); used += len(g.L) - n0
        while hiq and (used < cap or hiq[0][0] <= i):
            it = hiq.pop(0)[1]; n0 = len(g.L); emit(it); used += len(g.L) - n0
        over = o["epi_over"] if (cap == 8 and ("hst", nE - 1) not in ids) else 0
        while loq and used < cap + over:
            if loq[0] == "GATE":
                if A and any(is_vm(it) and key0(it) == "w1" for it in memq): break
                loq.pop(0); continue
            if not isinstance(loq[0], str) and loq[0][0] == "lg" and (g.lg_n - g.lg_done) >= 15: break
            it = loq.pop(0); n0 = len(g.L); emit(it); used += len(g.L) - n0
    assert not hiq and not w2steps
    emit_all(loq); loq[:] = []
    while ldsq: emit(ldsq.pop(0))
    memq[0:0] = stq
    g.stamp("pass2_end")

    def hreg(n):
        if not A: return ("a", 4 * n) if n < 24 else ("v", 96 + 4 * (n - 24)) if n < 64 else ("a", 4 * (n - 64))
        if n < 12: return ("a", 32 + 4 * n)
        if n < 28: return ("v", 192 + 4 * (n - 12))
        if n < 52: return ("v", 96 + 4 * (n - 28))
        return hreg(n - 52)
    reuse = 26 if A else 32
    NH = o["NH"]
    sHA, sHB = sXO[1], sXO[2]
    def hload(ks):
        out = []
        if ks < 28:
            if ks % 4 == 0:
                if ks < 20: out += [f"s_add_u32 s{sHA}, s{sH0}, s{sGK[ks>>2]}", f"s_add_u32 s{sHB}, s{sH1}, s{sGK[ks>>2]}"]
                else: out += [f"s_add_u32 s{sHA}, s{sH0}, {8192 if ks == 20 else 20480}", f"s_add_u32 s{sHB}, s{sH1}, {8192 if ks == 20 else 20480}"]
            so = (sHA, sHB)
        else:
            if ks == 32: out += [f"s_add_u32 s{sO0}, s{sO0}, 4096", f"s_add_u32 s{sO1}, s{sO1}, 4096"]
            so = (sO0, sO1)
        for i in range(2):
            t, r = hreg(2 * ks + i)
            out.append(("vm", ("h", 2 * ks + i), f"buffer_load_dwordx4 {t}[{r}:{r+3}], v{vL16}, {srd(SWS)}, s{so[i]} offen offset:{(ks&3)*1024} sc1"))
        return out
    hpoll = [("vm", "hp", f"buffer_load_dword v{vPd}, v{vPo}, {srd(SWS)}, 0 offen sc1")]
    lflag = ("vm", "of", f"buffer_store_dword v{vOne}, v{vFl}, {srd(SWS)}, 0 offen offset:128 sc1")
    def hcheck():
        emit(need("hp"))
        if "lst" in ids and g.vm_done > ids["lst"]: emit(lflag); done.add("oflag"); g.stamp("oflag")
        e(f"v_cmp_ne_u32 vcc, 1, v{vPd}"); e("s_nop 4"); e(f"s_cbranch_vccnz L_hspin{X}")
        g.label(f"L_hok{X}")
        g.stamp("hpoll_ok")
        hl = []
        for ks in range(NH): hl += hload(ks)
        memq[0:0] = hl
    def flush_early_flag():
        if "hflag" not in done:
            while any(is_vm(it) and key0(it) == "hst" for it in memq): emit(memq.pop(0))
            hflag()
    R_ = o["att_ratio"]
    a0, a1, a2, a3 = 12, 13, 14, 15
    if A:
        vVW, vVW2, vKR, vVR, vVR2, vHWa = 16, 17, vKW, 18, 19, 1
        Pq = [f"v_and_b32 v{a0}, 0x1f0, v{vL16}", f"v_lshrrev_b32 v{a1}, 9, v{vL16}", f"s_lshl_b32 s{sT0}, s{sW}, 9", f"v_add_u32 v{a0}, s{sT0}, v{a0}",
              f"v_mul_u32_u24 v{a2}, {REG}, v{a1}", f"v_add_u32 v{vVW}, v{a2}, v{a0}", f"v_add_u32 v{vVW2}, {2*REG}, v{vVW}",
              f"v_mul_u32_u24 v{a2}, 2304, v{a1}", f"v_add_u32 v{vVR}, v{a2}, v{a0}", f"v_add_u32 v{vVR2}, {2*REG + VO}, v{vVR}", f"v_add_u32 v{vVR}, {VO}, v{vVR}",
              f"v_lshrrev_b32 v{a1}, 8, v{vL16}", f"v_mul_u32_u24 v{a1}, {REG}, v{a1}", f"v_and_b32 v{a2}, 0xf0, v{vL16}", f"s_mul_i32 s{sT0}, s{sW}, 2304",
              f"v_add3_u32 v{vHWa}, v{a1}, v{a2}, s{sT0}", "s_nop 0"]
        for hp in range(2):
            for j, (rg, off) in enumerate([(vVW, 0), (vVW2, 0), (vVW, 2304), (vVW2, 2304)]):
                Pq.append(("lg", "vw", f"ds_write_b128 v{rg}, a[{32+16*hp+4*j}:{32+16*hp+4*j+3}] offset:{VO + 256 + 4608*hp + off}"))
        Pq.append(("lg", "vw", f"ds_write_b128 v{vHWa}, a[{AHV}:{AHV+3}] offset:{VO}"))
        weave(Pq, memq, R_)
        flush_early_flag()
        g.wait_all_lg()
        e("s_barrier")
        g.stamp("attn_bar")
        memq.extend(w2dma(la1))
        KB = 128; VB = 128; LG = [32, 40]; SM = 48; O = 96; OP = [112, 120]
        def kread(hp):
            return [("lg", ("kr", hp, w), f"ds_read_b128 v[{KB+8*w+4*p}:{KB+8*w+4*p+3}], v{vKR} offset:{KO + 32 + 2304*hp + (14-2*w)*16 + REG*p}") for w in range(8) for p in range(2)]
        def vread(hp, w):
            return [("lg", ("vr", hp, w), f"ds_read_b128 v[{VB+16*(w&3)+4*dq}:{VB+16*(w&3)+4*dq+3}], v{vVR if dq < 2 else vVR2} offset:{32 + 4608*hp + (14-2*w)*16 + REG*(dq&1)}") for dq in range(4)]
        sMK = [None] + [f"s[{38+2*j}:{39+2*j}]" for j in range(1, 7)] + ["vcc"]
        MK = [f"s_lshl_b32 s{sT0}, s{sMT}, 7", f"s_lshl_b32 s{sT1}, s{sW}, 5", f"s_add_u32 s{sT0}, s{sT0}, s{sT1}",
              f"v_bfe_u32 v{a0}, v{vL16}, 4, 5", f"v_add_u32 v{a0}, s{sT0}, v{a0}", f"v_mov_b32 v{a1}, 0xcf6e6b28", f"s_mov_b32 s{sT2}, 0x3eb8aa3b"]
        MK += [f"v_cmp_le_u32 {sMK[w]}, {2*w}, v{a0}" for w in range(7, 0, -1)]
        def qk(hp):
            out = []
            for w2 in range(0, 8, 2):
                out.append(W(lg=("kr", hp, w2 + 1)))
                for j in range(8):
                    for w in (w2, w2 + 1):
                        out.append(f"v_dot2_f32_bf16 v{LG[hp]+w}, v{Qb[hp]+j}, v{KB+8*w+j}, {'0' if j == 0 else 'v%d' % (LG[hp]+w)}")
                if hp == 0: out += [x for x in kread(1) if x[1][2] in (w2, w2 + 1)]
                else: out += vread(0, w2 >> 1)
            return out
        def smx(hp):
            L_ = LG[hp]
            out = [f"v_cndmask_b32 v{L_+w}, v{a1}, v{L_+w}, {sMK[w]}" for w in range(1, 8)]
            out += [f"v_max3_f32 v{a2}, v{L_}, v{L_+1}, v{L_+2}", f"v_max3_f32 v{a3}, v{L_+3}, v{L_+4}, v{L_+5}", f"v_max3_f32 v{a2}, v{a2}, v{L_+6}, v{L_+7}", f"v_max_f32 v{a2}, v{a2}, v{a3}"]
            out += [f"v_mul_f32 v{a2}, s{sT2}, v{a2}"]
            out += [f"v_fma_f32 v{L_+w}, v{L_+w}, s{sT2}, -v{a2}" for w in range(8)]
            out += [f"v_exp_f32 v{L_+w}, v{L_+w}" for w in range(8)]
            out += ["s_nop 0", f"v_pk_add_f32 v[{SM}:{SM+1}], v[{L_}:{L_+1}], v[{L_+2}:{L_+3}]", f"v_pk_add_f32 v[{SM+2}:{SM+3}], v[{L_+4}:{L_+5}], v[{L_+6}:{L_+7}]",
                    f"v_pk_add_f32 v[{SM}:{SM+1}], v[{SM}:{SM+1}], v[{SM+2}:{SM+3}]", f"v_add_f32 v{SM}, v{SM}, v{SM+1}", f"v_rcp_f32 v{SM}, v{SM}", "s_nop 0"]
            out += [f"v_pk_mul_f32 v[{L_+2*j}:{L_+2*j+1}], v[{L_+2*j}:{L_+2*j+1}], v[{SM}:{SM+1}] op_sel_hi:[1,0]" for j in range(4)]
            return out
        def av(hp):
            out = []
            for w in range(8):
                out.append(W(lg=("vr", hp, w)))
                pw = LG[hp] + (w & ~1); sel = w & 1
                for j in range(8):
                    r = VB + 16 * (w & 3) + 2 * j
                    if w == 0: out.append(f"v_pk_mul_f32 v[{O+2*j}:{O+2*j+1}], v[{r}:{r+1}], v[{pw}:{pw+1}] op_sel:[0,{sel}] op_sel_hi:[1,{sel}]")
                    else: out.append(f"v_pk_fma_f32 v[{O+2*j}:{O+2*j+1}], v[{r}:{r+1}], v[{pw}:{pw+1}], v[{O+2*j}:{O+2*j+1}] op_sel:[0,{sel},0] op_sel_hi:[1,{sel},1]")
                if w + 4 < 8: out += vread(hp, w + 4)
                elif hp == 0: out += vread(1, w - 4)
            dst = {0: 0, 1: 1, 4: 2, 5: 3, 2: 4, 3: 5, 6: 6, 7: 7}
            out += [f"v_cvt_pk_bf16_f32 v{OP[hp]+dst[p]}, v{O+2*p}, v{O+2*p+1}" for p in range(8)]
            out += ["s_nop 1"] + [f"v_permlane32_swap_b32 v{OP[hp]+j}, v{OP[hp]+4+j}" for j in range(4)]
            st = [("vm", "lst", f"buffer_store_dwordx4 v[{OP[hp]+4*h}:{OP[hp]+4*h+3}], v{vL16}, {srd(SWS)}, s{sTb} offen offset:{2048*hp + 1024*h} sc1") for h in range(2)]
            if o["o_hold"]:
                held.extend(st)
                if hp == 1: out += held
            else: out += st
            return out
        held = []
        segs = [kread(0) + MK, qk(0), qk(1) + ["s_nop 1"], smx(0) + smx(1), av(0), av(1)]
        for n_, sg in enumerate(segs):
            if o["hp_issue"] == n_: memq[0:0] = hpoll
            weave(sg, memq, R_)
            if n_ == 3: vcc_free = True
            if o["hp_check"] == n_:
                assert n_ >= 3
                hcheck()
    else:
        while any(is_vm(it) and it[1] == "res" for it in memq): emit(memq.pop(0))
        if "hp" not in ids: emit_all(hpoll)
        flush_early_flag()
        if o["b_mode"] == 0: hcheck()
        else: e("s_nop 9")
        late = []; lst = []
        for b in range(4):
            its, st = mlp_epi("v", 64 + 16 * b, None, "lst", sTb, 1024 * b)
            late += its; lst += st
        weave(late, memq, o["b_ratio"]); emit_all(lst)
        flush_early_flag()
        g.wait_all_lg()
        e("s_barrier")
        g.stamp("attn_bar")
        if o["b_mode"] == 1: hcheck()
        memq.extend(w2dma(lb3))
    g.stamp("attn_end")
    ACC = 32; XR = 64
    e(f"v_and_b32 v{a0}, 0x1f0, v{vL16}"); e(f"v_lshlrev_b32 v{a0}, 2, v{a0}"); e(f"v_lshrrev_b32 v{a1}, 9, v{vL16}"); e(f"v_lshl_add_u32 v{a0}, v{a1}, 3, v{a0}")
    e(f"v_bfe_u32 v{a1}, v{vL16}, 6, 2"); e(f"v_lshl_add_u32 v{a0}, v{a1}, 4, v{a0}"); e(f"v_add_u32 v{a0}, s{sRB}, v{a0}")
    for q in range(1, 4): e(f"v_xor_b32 v{a0+q}, {16*q}, v{a0}")
    emit(need("res"))
    for q in range(4): ids["resr"] = g.lg(f"ds_read_b64 v[{XR+2*q}:{XR+2*q+1}], v{a0+q} offset:{RU}")
    while any(is_vm(it) and key0(it) == "h" and it[1][1] < 4 for it in memq): emit(memq.pop(0))
    g.wait(lg=ids["resr"])
    for q in range(4):
        for h in range(2):
            e(f"v_lshlrev_b32 v{ACC+4*q+2*h}, 16, v{XR+2*q+h}"); e(f"v_and_b32 v{ACC+4*q+2*h+1}, s{sMASK}, v{XR+2*q+h}")
    e("s_nop 1")
    g.stamp("p2_start")
    FR2 = FR
    def w2frag(ks):
        if ks < NREG: return
        emit(need(("w2", ks)))
        for nb in range(2):
            r = FR2 + 8 * (ks % 4) + 4 * nb
            for sec in range(2):
                ids[("w2l", ks)] = g.lg(f"ds_read_b64_tr_b16 a[{r+2*sec}:{r+2*sec+1}], v{vTW[nb]} offset:{unit[ks] + 1024*sec}")
    vRW = 12; vRR = [13, 14, 15]; vXo = 16
    fin = [f"v_add_u32 v{vRW}, s{sRB}, v{vL16}"]
    for s in range(1, 4):
        fin += [f"s_xor_b32 s{sT0}, s{sW}, {s}", f"s_mul_i32 s{sT0}, s{sT0}, {REG}", f"v_add_u32 v{vRR[s-1]}, s{sT0}, v{vL16}"]
    fin += [f"v_and_b32 v17, 0x1f0, v{vL16}", "v_lshlrev_b32 v17, 6, v17", f"v_lshrrev_b32 v18, 9, v{vL16}", f"v_lshl_add_u32 v{vXo}, v18, 4, v17"]
    Lk = o["L"]; nxt = NH; oflag = "oflag" in done
    pend = [it for it in memq if (is_vm(it) and key0(it) == "h") or (isinstance(it, str) and it.startswith((f"s_add_u32 s{sHA},", f"s_add_u32 s{sHB},")))]
    memq[:] = [it for it in memq if it not in pend]
    quota = [0.0]
    for _ in range(o["p2_fill"]): P.one_vm(pend) or P.one_vm(memq)
    for ks in range(36):
        for nm, at, msk in (("m", o["mp_check"], "0x0f0f0f0f"), ("o", o["op_check"], "0xf0f0f0f0")):
            if ks == at:
                emit(need(nm + "p", pend))
                e(f"v_cmp_ne_u32 vcc, 1, v{vPd}"); e("s_nop 4"); e(f"s_and_b32 vcc_lo, vcc_lo, {msk}"); e(f"s_cbranch_scc1 L_{nm}spin{X}")
                g.label(f"L_{nm}ok{X}")
                g.stamp(nm + "poll_ok")
        while nxt < 36 and nxt <= ks + Lk and (nxt < 20 or (nxt < 28 and ks >= o["mp_check"]) or ks >= o["op_check"]):
            assert nxt < reuse or nxt - reuse < ks
            pend += hload(nxt); nxt += 1
        for nm, at in (("m", o["mp_issue"]), ("o", o["op_issue"])):
            if ks == at: pend.insert(0, ("vm", nm + "p", f"buffer_load_dword v{vPd}, v{vPo}, {srd(SWS)}, 0 offen offset:128 sc1"))
        if A and ks - 2 + 12 in la4 and ks % 2 == 0: memq.extend(w2dma([ks + 10, ks + 11]))
        if not A and ks - 1 + 19 in lb4: memq.extend(w2dma([ks - 1 + 19]))
        while any(is_vm(it) and key0(it) == "h" and it[1][1] <= 2 * (ks + o["Lmin"]) + 1 for it in pend): emit(pend.pop(0))
        g.wait(vm=ids[("h", 2 * ks + 1)], lg=ids.get(("w2l", ks)))
        if not oflag and g.vm_done > ids["lst"]:
            pend.insert(0, lflag); oflag = True
            g.stamp("oflag")
        g.stamp(f"k{ks}")
        order = [(0, 0), (0, 1), (1, 0), (1, 1)] if ks < 35 else [(0, 1), (1, 0), (1, 1), (0, 0)]
        for n_, (i, j) in enumerate(order):
            t, r = hreg(2 * ks + i)
            wr = (w2reg(ks) + 4 * j) if ks < NREG else (FR2 + 8 * (ks % 4) + 4 * j)
            d = f"v[{ACC+32*i+16*j}:{ACC+32*i+16*j+15}]"
            e(f"v_mfma_f32_32x32x16_bf16 {d}, a[{wr}:{wr+3}], {t}[{r}:{r+3}], {d if (ks or (i == 0 and j == 0)) else '0'}")
            if n_ == 0 and ks + 2 < 36: w2frag(ks + 2)
            quota[0] += o["rate"] / 4.0
            if quota[0] >= 1.0 and (n_ > 0 or ks + 2 < NREG):
                w2next = min([it[1][1] for it in memq if is_vm(it) and key0(it) == "w2"] + [99])
                hnext = min([it[1][1] // 2 for it in pend if is_vm(it) and key0(it) == "h"] + [99])
                first, second = (memq, pend) if (w2next - 2 < hnext and not any(is_vm(it) and key0(it) in ("of", "mp", "op") for it in pend[:1])) else (pend, memq)
                if P.one_vm(first) or P.one_vm(second): quota[0] -= 1.0
                else: quota[0] = min(quota[0], 1.0)
            if ks >= 26:
                for _ in range(3):
                    if fin: e(fin.pop(0))
    assert not pend and not memq
    assert oflag and not fin and o["mp_issue"] < o["mp_check"] <= o["op_issue"] < o["op_check"]
    g.stamp("p2_end")
    e("s_nop 8")
    for s in range(1, 4):
        for q in range(4):
            g.lg(f"ds_write_b128 v{vRW}, v[{ACC+16*s+4*q}:{ACC+16*s+4*q+3}] offset:{4096*(s-1) + 1024*q}")
    g.wait_all_lg()
    e("s_barrier")
    RD = 96
    for s in range(1, 4):
        for q in range(4):
            ids[("rr", s, q)] = g.lg(f"ds_read_b128 v[{RD+16*(s-1)+4*q}:{RD+16*(s-1)+4*q+3}], v{vRR[s-1]} offset:{4096*(s-1) + 1024*q}")
    for s in range(1, 4):
        for q in range(4):
            g.wait(lg=ids[("rr", s, q)])
            for h in range(2):
                a = ACC + 4 * q + 2 * h; b = RD + 16 * (s - 1) + 4 * q + 2 * h
                e(f"v_pk_add_f32 v[{a}:{a+1}], v[{a}:{a+1}], v[{b}:{b+1}]")
    PK = 48
    for j in range(8): e(f"v_cvt_pk_bf16_f32 v{PK+j}, v{ACC+2*j}, v{ACC+2*j+1}")
    e("s_nop 0")
    for p in range(2):
        e(f"v_permlane32_swap_b32 v{PK+4*p}, v{PK+4*p+2}"); e(f"v_permlane32_swap_b32 v{PK+4*p+1}, v{PK+4*p+3}")
    for p in range(2):
        g.vm(f"buffer_store_dwordx4 v[{PK+4*p}:{PK+4*p+3}], v{vXo}, {srd(SOUT)}, s{sXR} offen offset:{32*p} {o['out_sc']}")
    if diag:
        g.stamp("end")
        e("s_memrealtime s[70:71]")
        e("s_waitcnt lgkmcnt(0) vmcnt(0)")
        e(f"s_lshl_b32 s{sT0}, s{sM2}, 3"); e(f"s_add_u32 s{sT0}, s{sT0}, s{sNT}"); e(f"s_lshl_b32 s{sT0}, s{sT0}, 2"); e(f"s_add_u32 s{sT0}, s{sT0}, s{sW}")
        e(f"s_lshl_b32 s{sT0}, s{sT0}, 6"); e(f"s_add_u32 s{sT0}, s{sT0}, {0xB00000}")
        e(f"s_mov_b32 s{SWS+2}, 0x1000000")
        for i, r in [(i, ST0 + 2 * i) for i in range(len(g.want))] + [(12, sSL), (13, 100), (14, 101), (15, 70)]:
            e(f"v_mov_b32 v1, s{r}"); e(f"v_mov_b32 v2, {4*i}")
            e(f"buffer_store_dword v1, v2, {srd(SWS)}, s{sT0} offen")
        e("s_waitcnt vmcnt(0)")
    e("s_endpgm")
    g.label(f"L_dbgspin{X}")
    e(f"s_add_u32 s{sSPIN}, s{sSPIN}, 1"); e(f"s_cmp_gt_u32 s{sSPIN}, {SPIN_MAX}"); e(f"s_cbranch_scc1 L_dbgok{X}")
    e("s_sleep 2")
    e(f"buffer_load_dword v{vCK}, off, {srd(SDBG)}, s{sT5} sc1")
    e("s_waitcnt vmcnt(0)")
    e(f"v_readfirstlane_b32 s2, v{vCK}")
    e(f"s_cmp_lg_u32 s2, 0")
    e(f"s_cbranch_scc0 L_dbgspin{X}")
    e(f"s_branch L_dbgok{X}")
    for nm, off, back, msk in ((f"L_hspin{X}", 0, f"L_hok{X}", "0xffffffff"), (f"L_mspin{X}", 128, f"L_mok{X}", "0x0f0f0f0f"), (f"L_ospin{X}", 128, f"L_ook{X}", "0xf0f0f0f0")):
        g.label(nm)
        e(f"s_add_u32 s{sSPIN}, s{sSPIN}, 1"); e(f"s_cmp_gt_u32 s{sSPIN}, {SPIN_MAX}"); e(f"s_cbranch_scc1 {back}")
        e("s_sleep 1")
        e(f"buffer_load_dword v{vPd}, v{vPo}, {srd(SWS)}, 0 offen offset:{off} sc1")
        e("s_waitcnt vmcnt(0)")
        e(f"v_cmp_ne_u32 vcc, 1, v{vPd}"); e("s_nop 4"); e(f"s_and_b32 vcc_lo, vcc_lo, {msk}")
        e(f"s_cbranch_scc1 {nm}")
        e(f"s_branch {back}")

def gen(diag=False, opt=None):
    o = dict(DEFAULTS)
    if opt: o.update(opt)
    g = G(diag, list(o["stamps"]))
    xd0 = common_prologue(g, o, diag)
    state = (g.vm_n, g.vm_done, g.lg_n, g.lg_done, g.smem)
    ob = dict(o); ob.update(o.get("B", {}))
    program(g, ob, "B", diag, xd0)
    g.L.append(".p2align 6")
    g.label("L_typeA")
    g.vm_n, g.vm_done, g.lg_n, g.lg_done, g.smem = state
    oa = dict(o); oa.update(dict(hp_issue=4, hp_check=5, dma_gap=1)); oa.update(o.get("A", {}))
    program(g, oa, "A", diag, xd0)
    g.label("L_end")
    g.e("s_endpgm")
    g.label("L_codeend")
    if o.get("x_hit"):
        import re
        for n_, ln in enumerate(g.L):
            if " lds" in ln and (("s[12:15]" in ln or "s[16:19]" in ln or "s[44:47]" in ln) and o["x_hit"] & 1 or ("s[20:23]" in ln or "s[24:27]" in ln) and o["x_hit"] & 2):
                g.L[n_] = re.sub(r"\], s\d+ offen", "], 0 offen", ln)
    hdr = open("cdna_kernels/" + NAME + ".s.ref").read().split("; Override")[0]
    txt = hdr + "; @launch grid=(256,1,1) block=(256,1,1) lds=163840\n"
    txt += f""".amdgcn_target "amdgcn-amd-amdhsa--gfx950"
.text
.globl {NAME}_kernel
.p2align 8
.type {NAME}_kernel,@function
{NAME}_kernel:
""" + "\n".join(g.L) + f"""
.section .rodata,"a"
.p2align 6
.amdhsa_kernel {NAME}_kernel
  .amdhsa_next_free_vgpr 512
  .amdhsa_next_free_sgpr 102
  .amdhsa_accum_offset 256
  .amdhsa_group_segment_fixed_size 0
  .amdhsa_kernarg_size 80
  .amdhsa_user_sgpr_count 2
  .amdhsa_user_sgpr_kernarg_segment_ptr 1
  .amdhsa_system_sgpr_workgroup_id_x 1
.end_amdhsa_kernel
"""
    return txt, list(o["stamps"])

if __name__ == "__main__":
    import json
    diag = "--diag" in sys.argv
    args = [a for a in sys.argv[1:] if not a.startswith("--")]
    opt = json.loads(args[1]) if len(args) > 1 else None
    txt, names = gen(diag, opt)
    open(args[0] if args else "v4.s", "w").write(txt)
    print("stamps:", names, "lines:", txt.count("\n"))
```
